```python
import torch

def _softmax(x, axis=-1):
    return torch.softmax(x, dim=axis)
def _gelu(x):
    return torch.nn.functional.gelu(x, approximate="tanh")
def _silu(x):
    return torch.nn.functional.silu(x)
def _sigmoid(x):
    return torch.sigmoid(x)
def _layernorm(x, axis=-1, eps=1e-5):
    m = x.mean(dim=axis, keepdim=True)
    v = x.var(dim=axis, keepdim=True, unbiased=False)
    return (x - m) / torch.sqrt(v + eps)
def _scatter_add(tgt, idx, src, axis=0):
    return tgt.clone().index_add_(axis, idx, src)
def _segment_sum(src, seg, n):
    out = torch.zeros((n,) + src.shape[1:], dtype=src.dtype)
    return out.index_add_(0, seg, src)
def _pad(x, pw):
    flat = tuple(v for pair in reversed(pw) for v in pair)
    return torch.nn.functional.pad(x, flat)

kernel_name = 'concat_heads__gqa_block_cached__gqa_block_cached__near_ridge'

def setup_inputs():

    _w = (lambda a: (lambda t: t.to(torch.bfloat16) if t.is_floating_point() else t)(torch.as_tensor(a)))
    def _A_setup():
        B, Sq, D = 32, 32, 512
        Hq, Hkv, Sk, Dh = 32, 8, 512, 128
        assert Hq % Hkv == 0, (Hq, Hkv)
        return {
            "x": _w((lambda *s: torch.randn(*s, dtype=torch.bfloat16) * 0.8)(B, Sq, D)),
            "k_cache": _w((lambda *s: torch.randn(*s, dtype=torch.bfloat16) * 0.8)(B, Hkv, Sk, Dh)),
            "v_cache": _w((lambda *s: torch.randn(*s, dtype=torch.bfloat16) * 0.05)(B, Hkv, Sk, Dh)),
            "wq": _w((lambda *s: torch.randn(*s, dtype=torch.bfloat16) * 0.8)(D, Hq * Dh) * (D ** -0.5)),
            "wo": _w((lambda *s: torch.randn(*s, dtype=torch.bfloat16) * 0.05)(Hq * Dh, D) * ((Hq * Dh) ** -0.5)),
        }
    _A_in = _A_setup()

    def _B_setup():
        B, Sq, D = 32, 32, 512
        Hq, Hkv, Sk, Dh = 32, 8, 512, 128
        assert Hq % Hkv == 0, (Hq, Hkv)
        return {
            "x": _w((lambda *s: torch.randn(*s, dtype=torch.bfloat16) * 0.8)(B, Sq, D)),
            "k_cache": _w((lambda *s: torch.randn(*s, dtype=torch.bfloat16) * 0.8)(B, Hkv, Sk, Dh)),
            "v_cache": _w((lambda *s: torch.randn(*s, dtype=torch.bfloat16) * 0.05)(B, Hkv, Sk, Dh)),
            "wq": _w((lambda *s: torch.randn(*s, dtype=torch.bfloat16) * 0.8)(D, Hq * Dh) * (D ** -0.5)),
            "wo": _w((lambda *s: torch.randn(*s, dtype=torch.bfloat16) * 0.05)(Hq * Dh, D) * ((Hq * Dh) ** -0.5)),
        }
    _B_in = _B_setup()

    return {
        "A_x": _A_in["x"],
        "A_k_cache": _A_in["k_cache"],
        "A_v_cache": _A_in["v_cache"],
        "A_wq": _A_in["wq"],
        "A_wo": _A_in["wo"],
        "B_x": _B_in["x"],
        "B_k_cache": _B_in["k_cache"],
        "B_v_cache": _B_in["v_cache"],
        "B_wq": _B_in["wq"],
        "B_wo": _B_in["wo"],
    }

def reference(A_x, A_k_cache, A_v_cache, A_wq, A_wo, B_x, B_k_cache, B_v_cache, B_wq, B_wo):
    def _A_ref(x, k_cache, v_cache, wq, wo):
        B, Sq, D = x.shape
        Hq, Dh = 32, 128
        Hkv = k_cache.shape[1]
        rep = Hq // Hkv
        q = (lambda x, *d: x.permute(*d))((x @ wq).reshape(B, Sq, Hq, Dh), 0, 2, 1, 3)
        k = (lambda x, n, axis: torch.repeat_interleave(x, n, dim=axis))(k_cache, rep, axis=1)
        v = (lambda x, n, axis: torch.repeat_interleave(x, n, dim=axis))(v_cache, rep, axis=1)
        scores = torch.einsum("bhqd,bhkd->bhqk", q, k) * (Dh ** -0.5)
        p = _softmax(scores, axis=-1)
        o = torch.einsum("bhqk,bhkd->bhqd", p, v)
        return (lambda x, *d: x.permute(*d))(o, 0, 2, 1, 3).reshape(B, Sq, Hq * Dh) @ wo

    def _B_ref(x, k_cache, v_cache, wq, wo):
        B, Sq, D = x.shape
        Hq, Dh = 32, 128
        Hkv = k_cache.shape[1]
        rep = Hq // Hkv
        q = (lambda x, *d: x.permute(*d))((x @ wq).reshape(B, Sq, Hq, Dh), 0, 2, 1, 3)
        k = (lambda x, n, axis: torch.repeat_interleave(x, n, dim=axis))(k_cache, rep, axis=1)
        v = (lambda x, n, axis: torch.repeat_interleave(x, n, dim=axis))(v_cache, rep, axis=1)
        scores = torch.einsum("bhqd,bhkd->bhqk", q, k) * (Dh ** -0.5)
        p = _softmax(scores, axis=-1)
        o = torch.einsum("bhqk,bhkd->bhqd", p, v)
        return (lambda x, *d: x.permute(*d))(o, 0, 2, 1, 3).reshape(B, Sq, Hq * Dh) @ wo

    a = _A_ref(A_x, A_k_cache, A_v_cache, A_wq, A_wo)
    b = _B_ref(B_x, B_k_cache, B_v_cache, B_wq, B_wo)
    return torch.concatenate([a, b], axis=-1)
```

```python
class Asm:
    def __init__(self):
        self.lines = []
        self.uid = 0
    def __call__(self, s):
        for l in s.strip('\n').split('\n'):
            self.lines.append('    ' + l.strip())
    def label(self, name):
        self.lines.append(name + ':')
    def newlabel(self, pfx='L'):
        self.uid += 1
        return f'{pfx}_{self.uid}'
    def comment(self, s):
        self.lines.append('    ; ' + s)
    def raw(self, s):
        self.lines.append(s)
    def text(self):
        return '\n'.join(self.lines) + '\n'

def vr(b, n=1):
    return f'v{b}' if n == 1 else f'v[{b}:{b+n-1}]'
def ar(b, n=1):
    return f'a{b}' if n == 1 else f'a[{b}:{b+n-1}]'
def sr(b, n=1):
    return f's{b}' if n == 1 else f's[{b}:{b+n-1}]'

HEADER_COMMENTS = open('concat_heads__gqa_block_cached__gqa_block_cached__near_ridge.s.ref').read().split('; Override launch geometry')[0]

def kernel_begin(a, name):
    a.raw(f'.globl {name}')
    a.raw('.p2align 8')
    a.raw(f'.type {name},@function')
    a.label(name)

def descriptor(name, vgpr, accum, sgpr=102):
    return f'''.p2align 6
.amdhsa_kernel {name}
  .amdhsa_next_free_vgpr {vgpr}
  .amdhsa_next_free_sgpr {sgpr}
  .amdhsa_accum_offset {accum}
  .amdhsa_group_segment_fixed_size 0
  .amdhsa_kernarg_size 104
  .amdhsa_user_sgpr_count 2
  .amdhsa_user_sgpr_kernarg_segment_ptr 1
  .amdhsa_system_sgpr_workgroup_id_x 1
.end_amdhsa_kernel
'''

def file_text(launches, body, descs):
    t = HEADER_COMMENTS
    for (k, g, b, lds) in launches:
        if k is None:
            t += f'; @launch grid=({g},1,1) block=({b},1,1) lds={lds}\n'
        else:
            t += f'; @launch kernel={k} grid=({g},1,1) block=({b},1,1) lds={lds}\n'
    t += '.amdgcn_target "amdgcn-amd-amdhsa--gfx950"\n.text\n'
    t += body
    t += '.section .rodata,"a"\n'
    t += ''.join(descs)
    return t
```

```python
import re

TRANS = ('v_exp_f32', 'v_log_f32', 'v_rcp_f32', 'v_rsq_f32', 'v_sqrt_f32', 'v_sin_f32', 'v_cos_f32')

def regs_of(op):
    op = op.strip()
    op = op.lstrip('-').strip('|')
    m = re.fullmatch(r'([vsa])(\d+)', op)
    if m:
        return {(m.group(1), int(m.group(2)))}
    m = re.fullmatch(r'([vsa])\[(\d+):(\d+)\]', op)
    if m:
        return {(m.group(1), i) for i in range(int(m.group(2)), int(m.group(3)) + 1)}
    if op in ('vcc', 'vcc_lo', 'vcc_hi'):
        return {('vcc', 0)}
    if op == 'm0':
        return {('m0', 0)}
    if op in ('exec', 'exec_lo', 'exec_hi'):
        return {('exec', 0)}
    return set()

class Ins:
    def __init__(self, text):
        self.text = text
        t = text.split(';')[0].strip()
        self.label = None
        self.mn = None
        self.defs = set(); self.uses = set()
        self.kind = 'none'
        self.states = 0
        self.target = None
        if not t or t.startswith('.'):
            return
        if t.endswith(':'):
            self.label = t[:-1]
            return
        parts = t.split(None, 1)
        self.mn = mn = parts[0]
        rest = parts[1] if len(parts) > 1 else ''
        ops = [o.strip() for o in rest.split(',')] if rest else []
        mods = []
        if ops:
            l = ops[-1].split()
            ops[-1] = l[0] if l else ''
            mods = l[1:]
        self.ops = ops; self.mods = mods
        self.states = 1
        R = [regs_of(o) for o in ops]
        if mn.startswith('v_mfma'):
            self.kind = 'mfma'
            self.passes = 8 if '32x32x16' in mn else 4
            self.D = R[0]; self.A = R[1]; self.B = R[2]; self.C = R[3]
            self.defs = R[0]; self.uses = R[1] | R[2] | R[3]
        elif mn.startswith('v_'):
            self.kind = 'valu'
            self.trans = mn.replace('_e32', '').replace('_e64', '') in TRANS
            if mn.startswith('v_permlane'):
                self.defs = R[0] | R[1]; self.uses = R[0] | R[1]
            elif mn == 'v_nop':
                pass
            else:
                self.defs = set(R[0])
                for r in R[1:]:
                    self.uses |= r
                if mn.startswith('v_fmac') or mn.startswith('v_mac'):
                    self.uses |= R[0]
                if mn.startswith('v_cmpx'):
                    self.defs |= {('exec', 0)}
        elif mn.startswith('ds_read'):
            self.kind = 'dsr'; self.defs = R[0]; self.uses = R[1]
        elif mn.startswith('ds_write'):
            self.kind = 'dsw'
            for r in R: self.uses |= r
        elif mn.startswith('buffer_load') or mn.startswith('global_load'):
            self.kind = 'vml'
            self.lds = 'lds' in mods
            if self.lds:
                for r in R: self.uses |= r
                self.uses |= {('m0', 0)}
            else:
                self.defs = R[0]
                for r in R[1:]: self.uses |= r
        elif mn.startswith('buffer_store') or mn.startswith('global_store'):
            self.kind = 'vms'
            for r in R: self.uses |= r
            self.data = R[0] if mn.startswith('buffer') else R[1]
            self.wide = 'x4' in mn or 'x3' in mn
        elif mn.startswith('buffer_atomic') or mn.startswith('global_atomic'):
            self.kind = 'vms'
            for r in R: self.uses |= r
            self.defs = R[0]
            self.data = set(); self.wide = False
        elif mn.startswith('buffer_') :
            self.kind = 'vms'; self.data = set(); self.wide = False
        elif mn == 's_nop':
            self.kind = 'nop'; self.states = int(ops[0], 0) + 1
        elif mn.startswith('s_'):
            self.kind = 'salu'
            if mn.startswith('s_cbranch') or mn == 's_branch':
                self.target = ops[0]
            elif mn.startswith('s_cmp') or mn in ('s_waitcnt', 's_barrier', 's_endpgm', 's_setprio', 's_sleep'):
                for r in R: self.uses |= r
            else:
                if R:
                    self.defs = set(R[0])
                for r in R[1:]: self.uses |= r
                if 'saveexec' in mn:
                    self.defs |= {('exec', 0)}
        else:
            raise ValueError('unknown instruction: ' + text)

def vg(s):
    return {r for r in s if r[0] in 'va'}
def sg(s):
    return {r for r in s if r[0] in ('s', 'vcc')}

def need(p, c):
    n = 0
    if p.kind == 'valu':
        d = vg(p.defs)
        if c.kind == 'mfma' and d & c.uses: n = max(n, 2)
        if c.kind == 'valu':
            if c.mn.startswith('v_permlane') and d & c.uses: n = max(n, 2)
            if (c.mn.startswith('v_readfirstlane') or c.mn.startswith('v_readlane')) and d & c.uses: n = max(n, 1)
            if 'dpp' in c.text or 'row_' in c.text or 'quad_perm' in c.text:
                if d & c.uses: n = max(n, 2)
            if p.trans and not c.trans and d & (c.uses | c.defs): n = max(n, 1)
        if p.trans and c.kind in ('dsw', 'vms', 'dsr', 'vml') and d & c.uses: n = max(n, 1)
        s = sg(p.defs)
        if s:
            if c.kind in ('vml', 'vms') and s & c.uses: n = max(n, 5)
            if c.kind in ('valu', 'mfma') and s & c.uses: n = max(n, 2)
            if c.kind == 'valu' and c.mn.startswith('v_cndmask') and ('vcc', 0) in s: n = max(n, 2)
        if ('exec', 0) in p.defs:
            if c.kind == 'mfma': n = max(n, 4)
            if c.kind == 'valu' and (c.mn.startswith('v_permlane') or c.mn.startswith('v_read')): n = max(n, 4)
    if p.kind == 'mfma':
        big = {8: 12, 4: 8}[p.passes]
        if c.kind == 'mfma':
            if p.D & (c.A | c.B): n = max(n, big)
            if p.D & c.C:
                if not (p.D == c.C and p.passes == c.passes): n = max(n, big - 2)
            elif p.D & c.D:
                n = max(n, big)
        elif c.kind in ('valu', 'dsr', 'dsw', 'vml', 'vms'):
            if p.D & (c.uses | c.defs): n = max(n, big)
        if c.kind in ('valu', 'dsr', 'vml') and p.C & c.defs:
            n = max(n, {8: 7, 4: 3}[p.passes])
    if p.kind == 'salu' and ('m0', 0) in p.defs and c.kind == 'vml' and c.lds: n = max(n, 1)
    if p.kind == 'vms' and p.wide and p.data & c.defs:
        n = max(n, 2 if c.kind in ('valu', 'mfma') else 1)
    return n

def lacking(hist, c):
    dist = 0; miss = 0
    for p in reversed(hist):
        if p.states == 0: continue
        n = need(p, c)
        if n > dist: miss = max(miss, n - dist)
        dist += p.states
        if dist > 20: break
    return miss

def fix(lines, verbose=False):
    ins = [Ins(l) for l in lines]
    total = 0
    out = []
    hist = []
    for i in ins:
        if i.states:
            m = lacking(hist, i)
            if m:
                nop = Ins(f'    s_nop {m-1}')
                out.append(nop); hist.append(nop); total += m
                if verbose: print('nop', m, 'before', i.text.strip())
        out.append(i)
        hist.append(i)
        if i.mn in ('s_branch', 's_endpgm'):
            hist = []
        hist = hist[-40:]
    changed = True
    while changed:
        changed = False
        lab = {x.label: k for k, x in enumerate(out) if x.label}
        for k, x in enumerate(out):
            if x.target is None: continue
            j = lab[x.target]
            h = []
            q = k
            while q >= 0 and len(h) < 40:
                if q != k and out[q].mn in ('s_branch', 's_endpgm'): break
                h.append(out[q]); q -= 1
            h.reverse()
            cnt = 0
            q = j
            while q < len(out) and cnt < 20:
                y = out[q]
                if y.states:
                    m = lacking(h, y)
                    if m:
                        out.insert(k, Ins(f'    s_nop {m-1}'))
                        total += m
                        if verbose: print('branch-path nop', m, 'before', x.text.strip(), 'for', y.text.strip())
                        changed = True
                        break
                    cnt += y.states
                h.append(y)
                if y.mn in ('s_branch', 's_endpgm'): break
                q += 1
            if changed: break
    return [i.text for i in out], total
```

```python
import sys, struct
from asmlib import *
import hz

BASE = 'concat_heads__gqa_block_cached__gqa_block_cached__near_ridge'
NAME = BASE + '_kernel'
RED = 'gqa_reduce_kernel'

def fbits(x):
    return '0x%08x' % struct.unpack('<I', struct.pack('<f', x))[0]

RING = 65536
SLOT = 32768
RING_END = RING + 3 * SLOT

sW, sG, sIDX, sBLK, sBP = 3, 4, 5, 6, 7
sCUR, sPREV, sCNT, sT, sOFF, sTMP, sX, sW4K = 8, 9, 10, 11, 12, 13, 14, 15
SRD_K, SRD_V, SRD_WQ, SRD_WO, SRD_WS, SRD_X = 44, 48, 52, 56, 60, 64
sWB, sOFA, sOFB, sTHR, sLO, sSC, sNXT, sTMP2, sSTA = 68, 69, 70, 71, 72, 73, 74, 75, 76
STAMP0 = 80

vL = 1
vDW, vDA, vDB = 2, 6, 10
vXB, vWB, vWC, vXC = 14, 15, 17, 19
vKB, vVB, vKC, vVC = 21, 22, 26, 34
vSUM, vTS, vT = 38, 39, 41
vE = 48
vO, vS, vQ, vNM, vP, vF = 64, 128, 160, 192, 208, 224
vACC = 128

class Q:
    def __init__(self, a):
        self.a = a; self.q = []
    def issue(self, tag, text):
        self.a(text); self.q.append(tag)
    def wait(self, tag, extra=''):
        idx = [i for i, t in enumerate(self.q) if t == tag]
        if not idx:
            return
        n = len(self.q) - 1 - idx[-1]
        assert n <= 15, n
        self.a(f's_waitcnt lgkmcnt({n})')
        self.q = self.q[idx[-1] + 1:]
    def clear(self):
        self.q = []

def gen(stamps=False, nt_w=True, dbg=None):
    a = Asm()
    nstamp = [0]
    def stamp():
        if stamps:
            k = STAMP0 + 2 * nstamp[0]
            a(f's_memrealtime s[{k}:{k+1}]')
            nstamp[0] += 1
    kernel_begin(a, NAME)
    a(f'''
    s_cmp_ge_u32 s2, 256
    s_cbranch_scc1 L_exit
    s_load_dwordx16 s[16:31], s[0:1], 0
    s_load_dwordx8 s[32:39], s[0:1], 64
    s_load_dwordx2 s[40:41], s[0:1], 96
    ''')
    stamp()
    a(f'''
    v_lshrrev_b32 v2, 6, v0
    v_and_b32 v{vL}, 63, v0
    s_and_b32 s{sG}, s2, 7
    v_readfirstlane_b32 s{sW}, v2
    s_lshr_b32 s{sIDX}, s2, 3
    s_and_b32 s{sBLK}, s{sIDX}, 1
    s_lshr_b32 s{sBP}, s{sIDX}, 1
    s_lshl_b32 s{sW4K}, s{sW}, 12
    ''')
    a(f'''
    s_and_b32 s{sTMP}, s{sW}, 1
    s_lshl_b32 s{sTMP}, s{sTMP}, 3
    v_xor_b32 v48, s{sTMP}, v{vL}
    v_lshlrev_b32 v48, 4, v48
    ''')
    for j in range(1, 8):
        a(f'v_xor_b32 v{48+j}, {j*16}, v48')
    a(f'v_lshlrev_b32 v{vDW}, 4, v{vL}')
    for j in range(1, 4):
        swz = ((j & 2) << 2) | ((j & 1) << 1)
        a(f'v_xor_b32 v{vDW+j}, {swz*16}, v{vDW}')
        a(f'v_add_u32 v{vDW+j}, {j*7168}, v{vDW+j}')
    a(f'''
    s_lshl_b32 s{sTMP}, s{sBP}, 16
    s_lshl_b32 s{sTMP2}, s{sW}, 13
    s_add_u32 s{sOFF}, s{sTMP}, s{sTMP2}
    s_lshl_b32 s{sWB}, s{sG}, 10
    s_lshl_b32 s{sTMP}, s{sW}, 15
    s_add_u32 s{sWB}, s{sWB}, s{sTMP}
    s_mov_b32 m0, s{sTMP2}
    s_waitcnt lgkmcnt(0)
    s_cmp_eq_u32 s{sBLK}, 0
    s_cselect_b32 s{SRD_X}, s16, s26
    s_cselect_b32 s{SRD_X+1}, s17, s27
    s_mov_b32 s{SRD_X+2}, 0x100000
    s_mov_b32 s{SRD_X+3}, 0x00020000
    s_cselect_b32 s{SRD_WQ}, s22, s32
    s_cselect_b32 s{SRD_WQ+1}, s23, s33
    s_mov_b32 s{SRD_WQ+2}, 0x400000
    s_mov_b32 s{SRD_WQ+3}, 0x00020000
    ''')
    wfl = ' nt' if nt_w else ''
    def x_dma():
        a(f's_mov_b32 m0, s{sTMP2}')
        a('s_nop 0')
        for j in range(4):
            a(f'buffer_load_dwordx4 v{48+j}, s[{SRD_X}:{SRD_X+3}], s{sOFF} offen offset:{j*1024} lds')
        a(f's_add_u32 m0, s{sTMP2}, 4096')
        a(f's_add_u32 s{sOFF}, s{sOFF}, 4096')
        for j in range(4):
            a(f'buffer_load_dwordx4 v{52+j}, s[{SRD_X}:{SRD_X+3}], s{sOFF} offen offset:{j*1024} lds')
    def w_dma_first(t):
        a(f'''
        s_add_u32 s{sTMP}, s{sBP}, {t}
        s_and_b32 s{sTMP}, s{sTMP}, 15
        s_lshl_b32 s{sTMP}, s{sTMP}, 18
        s_add_u32 s{sTMP}, s{sTMP}, s{sWB}
        s_add_u32 m0, s{sW4K}, {RING + t*SLOT}
        s_nop 0
        ''')
        for j in range(4):
            a(f'buffer_load_dwordx4 v{vDW+j}, s[{SRD_WQ}:{SRD_WQ+3}], s{sTMP} offen offset:{j*1024}{wfl} lds')
    w_dma_first(0)
    x_dma()
    w_dma_first(1)
    a(f'''
    s_cmp_eq_u32 s{sBLK}, 0
    s_cselect_b32 s{SRD_K}, s18, s28
    s_cselect_b32 s{SRD_K+1}, s19, s29
    s_mov_b32 s{SRD_K+2}, 0x2000000
    s_mov_b32 s{SRD_K+3}, 0x00020000
    s_cselect_b32 s{SRD_V}, s20, s30
    s_cselect_b32 s{SRD_V+1}, s21, s31
    s_mov_b32 s{SRD_V+2}, 0x2000000
    s_mov_b32 s{SRD_V+3}, 0x00020000
    s_cselect_b32 s{SRD_WO}, s24, s34
    s_cselect_b32 s{SRD_WO+1}, s25, s35
    s_mov_b32 s{SRD_WO+2}, 0x400000
    s_mov_b32 s{SRD_WO+3}, 0x00020000
    s_mov_b32 s{SRD_WS}, s40
    s_mov_b32 s{SRD_WS+1}, s41
    s_mov_b32 s{SRD_WS+2}, 0x10000000
    s_mov_b32 s{SRD_WS+3}, 0x00020000
    ''')
    a(f'''
    s_lshr_b32 s{sTMP}, s{sW}, 2
    s_lshl_b32 s{sOFA}, s{sBP}, 1
    s_add_u32 s{sOFA}, s{sOFA}, s{sTMP}
    s_lshl_b32 s{sOFA}, s{sOFA}, 3
    s_add_u32 s{sOFA}, s{sOFA}, s{sG}
    s_lshl_b32 s{sOFA}, s{sOFA}, 17
    s_and_b32 s{sTMP}, s{sW}, 3
    s_lshl_b32 s{sTMP}, s{sTMP}, 12
    s_add_u32 s{sOFA}, s{sOFA}, s{sTMP}
    s_mov_b32 s{sOFB}, s{sOFA}
    s_mov_b32 s{sSTA}, 16384
    ''')
    a(f'''
    v_lshrrev_b32 v41, 5, v{vL}
    v_lshrrev_b32 v42, 4, v{vL}
    v_and_b32 v43, 15, v{vL}
    v_and_b32 v44, 31, v{vL}
    v_bfe_u32 v45, v{vL}, 2, 2
    ''')
    a(f'''
    v_xor_b32 v46, v43, v42
    v_lshlrev_b32 v46, 4, v46
    v_lshl_add_u32 v{vDA}, v42, 8, v46
    v_xor_b32 v{vDA+1}, 64, v{vDA}
    v_xor_b32 v{vDA+2}, 0x80, v{vDA}
    v_xor_b32 v{vDA+3}, 0xc0, v{vDA}
    ''')
    a(f'''
    v_lshlrev_b32 v46, 2, v42
    v_xor_b32 v46, v43, v46
    v_lshlrev_b32 v46, 4, v46
    v_lshl_add_u32 v{vDB}, v42, 8, v46
    v_mov_b32 v{vDB+1}, v{vDB}
    v_mov_b32 v{vDB+2}, v{vDB}
    v_mov_b32 v{vDB+3}, v{vDB}
    ''')
    a(f'''
    v_xor_b32 v46, v41, v43
    v_lshlrev_b32 v46, 4, v46
    v_lshl_add_u32 v{vXB}, v44, 10, v46
    ''')
    a(f'''
    s_lshr_b32 s{sTMP}, s{sW}, 2
    s_lshl_b32 s{sTMP}, s{sTMP}, 14
    v_lshl_add_u32 v{vKB}, v44, 8, v46
    v_add_u32 v{vKB}, s{sTMP}, v{vKB}
    ''')
    a(f'''
    v_and_b32 v46, 1, v42
    v_lshlrev_b32 v46, 4, v46
    v_bfe_u32 v47, v{vL}, 1, 1
    v_lshl_add_u32 v46, v47, 3, v46
    v_and_b32 v47, 1, v{vL}
    ''')
    a(f'''
    v_lshl_add_u32 v56, v47, 6, v46
    s_lshl_b32 s{sTMP2}, s{sW}, 7
    v_add_u32 v56, s{sTMP2}, v56
    v_and_b32 v57, 2, v45
    v_lshlrev_b32 v57, 6, v57
    v_and_b32 v58, 1, v45
    v_lshl_or_b32 v57, v58, 5, v57
    v_xor_b32 v56, v56, v57
    v_lshl_add_u32 v58, v41, 3, v45
    v_lshl_add_u32 v{vWB}, v58, 10, v56
    v_xor_b32 v{vWB+1}, 32, v{vWB}
    ''')
    a(f'''
    v_lshl_add_u32 v56, v47, 5, v46
    v_lshl_add_u32 v56, v45, 6, v56
    v_lshl_add_u32 v58, v41, 2, v45
    v_lshl_add_u32 v56, v58, 8, v56
    v_add_u32 v{vVB}, s{sTMP}, v56
    v_xor_b32 v{vVB+1}, 64, v{vVB}
    v_xor_b32 v{vVB+2}, 0x80, v{vVB}
    v_xor_b32 v{vVB+3}, 0xc0, v{vVB}
    ''')
    a(f'''
    s_mov_b32 s{sCUR}, {RING}
    s_mov_b32 s{sPREV}, {RING + 2*SLOT}
    s_mov_b32 s{sT}, s{sBP}
    s_mov_b32 s{sSC}, {fbits(128 ** -0.5 * 1.4426950408889634)}
    s_mov_b32 s{sTHR}, {fbits(-1.0)}
    s_mov_b32 s{sLO}, 0xff800000
    ''')

    q = Q(a)
    def next_slot(dst, src):
        return [f's_add_u32 s{dst}, s{src}, {SLOT}',
                f's_cmp_eq_u32 s{dst}, {RING_END}',
                f's_cselect_b32 s{dst}, {RING}, s{dst}']

    def w_addr_setup():
        return [f's_lshl_b32 s{sX}, s{sT}, 6',
                f'v_add_u32 v{vWC}, s{sCUR}, v{vWB}',
                f'v_add_u32 v{vWC+1}, s{sCUR}, v{vWB+1}',
                f'v_xor_b32 v{vXC}, s{sX}, v{vXB}',
                f'v_xor_b32 v{vXC+1}, 32, v{vXC}']

    def frag_reads(F, s):
        A = lambda t: [f'ds_read_b64_tr_b16 v[{F+4*t+2*e}:{F+4*t+2*e+1}], v{vWC+t} offset:{(16*s+4*e)*1024}' for e in range(2)]
        B = lambda u: [f'ds_read_b128 v[{F+8+4*u}:{F+8+4*u+3}], v{vXC+s} offset:{u*32768}']
        return A, B

    def pm(F, t, u, zero=False):
        d = vACC + (2 * t + u) * 16
        c = '0' if zero else f'v[{d}:{d+15}]'
        return f'v_mfma_f32_32x32x16_bf16 v[{d}:{d+15}], v[{F+4*t}:{F+4*t+3}], v[{F+8+4*u}:{F+8+4*u+3}], {c}'

    def dma(kind, j):
        if kind == 'wq':
            return f'buffer_load_dwordx4 v{vDW+j}, s[{SRD_WQ}:{SRD_WQ+3}], s{sOFF} offen offset:{j*1024}{wfl} lds'
        if kind == 'wo':
            return f'buffer_load_dwordx4 v{vDW+j}, s[{SRD_WO}:{SRD_WO+3}], s{sOFF} offen offset:{j*1024}{wfl} lds'
        if kind == 'a':
            return f'buffer_load_dwordx4 v{vDA+j}, s[{SRD_K}:{SRD_K+3}], s{sOFA} offen offset:{j*1024} nt lds'
        if kind == 'b':
            return f'buffer_load_dwordx4 v{vDB+j}, s[{SRD_V}:{SRD_V+3}], s{sOFB} offen offset:{j*1024} nt lds'

    def wstep(first, kind, vm, shift):
        F0, F1 = vF, vF + 16
        pre = []
        if kind in ('wq', 'wo'):
            pre = [f's_add_u32 s{sOFF}, s{sT}, 2', f's_and_b32 s{sOFF}, s{sOFF}, 15',
                   f's_lshl_b32 s{sOFF}, s{sOFF}, {shift}', f's_add_u32 s{sOFF}, s{sOFF}, s{sWB}']
        if kind:
            pre.append(f's_add_u32 m0, s{sPREV}, s{sW4K}')
        for p in pre: a(p)
        a(f's_waitcnt vmcnt({vm}) lgkmcnt(0)')
        q.clear()
        a('s_barrier')
        A, B = frag_reads(F0, 0)
        for t in A(0) + B(0) + B(1) + A(1): q.issue('f0', t)
        A1, B1 = frag_reads(F1, 1)
        if not first:
            a(pm(F1, 0, 0))
            if kind: a(dma(kind, 0))
            a(pm(F1, 0, 1))
            for t in A1(0): q.issue('f1', t)
            a(pm(F1, 1, 0))
            for t in B1(0): q.issue('f1', t)
            if kind: a(dma(kind, 1))
            a(pm(F1, 1, 1))
            for t in B1(1) + A1(1): q.issue('f1', t)
        else:
            for t in A1(0) + B1(0) + B1(1) + A1(1): q.issue('f1', t)
            if kind:
                a(dma(kind, 0)); a(dma(kind, 1))
        a(f's_mov_b32 s{sPREV}, s{sCUR}')
        for t in next_slot(sCUR, sCUR): a(t)
        a(f's_add_u32 s{sT}, s{sT}, 1')
        a(f's_and_b32 s{sT}, s{sT}, 15')
        q.wait('f0')
        a(pm(F0, 0, 0, first))
        if kind: a(dma(kind, 2))
        a(pm(F0, 0, 1, first))
        su = w_addr_setup()
        for t in su[:3]: a(t)
        a(pm(F0, 1, 0, first))
        if kind: a(dma(kind, 3))
        for t in su[3:]: a(t)
        a(pm(F0, 1, 1, first))

    def wtail():
        F1 = vF + 16
        for t in range(2):
            for u in range(2):
                a(pm(F1, t, u))

    def wphase(kind, shift, last_kinds, lbl):
        for t in w_addr_setup(): a(t)
        wstep(True, kind, 4, shift)
        a(f's_mov_b32 s{sCNT}, 13')
        a.label(lbl)
        wstep(False, kind, 4, shift)
        a(f's_sub_u32 s{sCNT}, s{sCNT}, 1')
        a(f's_cmp_lg_u32 s{sCNT}, 0')
        a(f's_cbranch_scc1 {lbl}')
        wstep(False, last_kinds[0], 4, shift)
        wstep(False, last_kinds[1], 4 if last_kinds[0] else 0, shift)

    wphase('wq', 18, ('a', 'b'), 'L_qloop')
    a(f's_add_u32 s{sOFA}, s{sOFA}, s{sSTA}')
    a(f's_add_u32 s{sOFB}, s{sOFB}, s{sSTA}')
    stamp()
    a('s_waitcnt lgkmcnt(0)')
    q.clear()
    a('s_barrier')
    wtail()
    a(f'''
    v_lshrrev_b32 v41, 5, v{vL}
    v_and_b32 v43, 15, v{vL}
    v_and_b32 v44, 31, v{vL}
    s_and_b32 s{sTMP}, s{sW}, 1
    s_lshl_b32 s{sTMP}, s{sTMP}, 3
    v_lshl_add_u32 v46, v41, 2, s{sTMP}
    v_xor_b32 v46, v46, v43
    v_lshlrev_b32 v46, 4, v46
    v_lshl_add_u32 v46, v44, 10, v46
    s_lshr_b32 s{sTMP}, s{sW}, 1
    s_lshl_b32 s{sTMP}, s{sTMP}, 8
    v_add_u32 v56, s{sTMP}, v46
    v_xor_b32 v57, 16, v56
    v_xor_b32 v58, 32, v56
    v_xor_b32 v59, 48, v56
    ''')
    for j in range(1, 4):
        a(f'v_subrev_u32 v{vDW+j}, {j*7168}, v{vDW+j}')
    a(f'''
    s_lshl_b32 s{sWB}, s{sG}, 19
    s_add_u32 s{sWB}, s{sWB}, s{sW4K}
    ''')
    for t in range(2):
        for u in range(2):
            d = vACC + (2 * t + u) * 16
            st = vO + (2 * t + u) * 8
            for i in range(16):
                a(f'v_mul_f32 v{d+i}, s{sSC}, v{d+i}')
            for i in range(8):
                a(f'v_cvt_pk_bf16_f32 v{st+i}, v{d+2*i}, v{d+2*i+1}')
            for c2 in range(2):
                a(f'ds_write_b128 v{56+2*t+c2}, v[{st+4*c2}:{st+4*c2+3}] offset:{u*32768}')
    a(f'''
    s_lshr_b32 s{sTMP}, s{sW}, 2
    s_lshl_b32 s{sTMP}, s{sTMP}, 15
    s_and_b32 s{sTMP2}, s{sW}, 3
    s_lshl_b32 s{sTMP2}, s{sTMP2}, 8
    s_add_u32 s{sTMP}, s{sTMP}, s{sTMP2}
    v_add_u32 v48, s{sTMP}, v{vXB}
    ''')
    for s in range(1, 8):
        a(f'v_xor_b32 v{48+s}, {s*32}, v48')
    def k_addr():
        r = [f'v_add_u32 v{vKC}, s{sCUR}, v{vKB}']
        for s in range(1, 8):
            r.append(f'v_xor_b32 v{vKC+s}, {s*32}, v{vKC}')
        return r
    def v_addr():
        return [f'v_add_u32 v{vVC+d}, s{sCUR}, v{vVB+d}' for d in range(4)]
    for t in k_addr(): a(t)
    a('s_waitcnt lgkmcnt(0)')
    a('s_barrier')
    for s in range(8):
        a(f'ds_read_b128 v[{vQ+4*s}:{vQ+4*s+3}], v{48+s}')
    for i in range(64): a(f'v_mov_b32 v{vO+i}, 0')
    for i in range(16): a(f'v_mov_b32 v{vNM+i}, 0')
    for i in range(16): a(f'v_mov_b32 v{vP+i}, 0')
    for i in range(16): a(f'v_mov_b32 v{vF+16+i}, 0')
    a(f'v_mov_b32 v{vSUM}, 0')
    a(f's_mov_b32 s{sCNT}, 8')

    def rd(m):
        F = vF + (m & 7) * 4
        if m < 16:
            kt, s = m >> 3, m & 7
            q.issue(m, f'ds_read_b128 v[{F}:{F+3}], v{vKC+s} offset:{kt*8192}')
        else:
            kt, c, dt = (m - 16) >> 3, ((m - 16) >> 2) & 1, m & 3
            for e in range(2):
                q.issue(m, f'ds_read_b64_tr_b16 v[{F+2*e}:{F+2*e+1}], v{vVC+dt} offset:{(32*kt+16*c+8*e)*256}')
    def mm(m):
        F = vF + (m & 7) * 4
        q.wait(m)
        if m < 16:
            kt, s = m >> 3, m & 7
            d = vS + kt * 16
            c = vNM if s == 0 else d
            a(f'v_mfma_f32_32x32x16_bf16 v[{d}:{d+15}], v[{F}:{F+3}], v[{vQ+4*s}:{vQ+4*s+3}], v[{c}:{c+15}]')
        else:
            kt, c, dt = (m - 16) >> 3, ((m - 16) >> 2) & 1, m & 3
            d = vO + dt * 16
            p = vP + kt * 8 + c * 4
            a(f'v_mfma_f32_32x32x16_bf16 v[{d}:{d+15}], v[{F}:{F+3}], v[{p}:{p+3}], v[{d}:{d+15}]')
    def softmax_ops(kt):
        S = vS + kt * 16
        ops = []
        for i in range(0, 16, 2):
            e0, e1 = vE + (i & 7), vE + ((i + 1) & 7)
            ops.append(f'v_exp_f32 v{e0}, v{S+i}')
            ops.append(f'v_exp_f32 v{e1}, v{S+i+1}')
            if i >= 2:
                p0, p1 = vE + ((i - 2) & 7), vE + ((i - 1) & 7)
                ops += fin(kt, i - 2, p0, p1)
        ops += fin(kt, 14, vE + 6, vE + 7)
        ops.append(f'v_add_f32 v{vTS}, v{vTS}, v{vTS+1}')
        return ops
    def fin(kt, i, p0, p1):
        r = []
        if i == 0:
            r.append(f'v_cvt_pk_bf16_f32 v{vP+kt*8}, v{p0}, v{p1}')
        elif i == 2:
            r.append(f'v_add_f32 v{vTS}, v{vE}, v{p0}')
            r.append(f'v_add_f32 v{vTS+1}, v{vE+1}, v{p1}')
            r.append(f'v_cvt_pk_bf16_f32 v{vP+kt*8+1}, v{p0}, v{p1}')
        else:
            r.append(f'v_add_f32 v{vTS}, v{vTS}, v{p0}')
            r.append(f'v_add_f32 v{vTS+1}, v{vTS+1}, v{p1}')
            r.append(f'v_cvt_pk_bf16_f32 v{vP+kt*8+i//2}, v{p0}, v{p1}')
        return r
    def spread(ops, n):
        out = []
        k = 0
        for i in range(n):
            e = (len(ops) * (i + 1)) // n
            out.append(ops[k:e]); k = e
        return out

    a.label('L_aloop')
    a(f's_cmp_lg_u32 s{sCNT}, 1')
    a('s_cbranch_scc1 L_anorm')
    for j in range(4):
        a(f's_mov_b32 s{SRD_K+j}, s{SRD_WO+j}')
        a(f's_mov_b32 s{SRD_V+j}, s{SRD_WO+j}')
        a(f'v_mov_b32 v{vDA+j}, v{vDW+j}')
        a(f'v_mov_b32 v{vDB+j}, v{vDW+j}')
    a(f'''
    s_lshl_b32 s{sOFA}, s{sBP}, 15
    s_add_u32 s{sOFA}, s{sOFA}, s{sWB}
    s_add_u32 s{sOFB}, s{sBP}, 1
    s_and_b32 s{sOFB}, s{sOFB}, 15
    s_lshl_b32 s{sOFB}, s{sOFB}, 15
    s_add_u32 s{sOFB}, s{sOFB}, s{sWB}
    ''')
    a.label('L_anorm')
    a(f's_add_u32 m0, s{sPREV}, s{sW4K}')
    a('s_waitcnt vmcnt(4) lgkmcnt(0)')
    q.clear()
    a('s_barrier')
    for m in range(4): rd(m)
    a(f's_mov_b32 s{sPREV}, s{sCUR}')
    for t in next_slot(sCUR, sCUR): a(t)
    va = v_addr()
    for m in (28, 29, 30, 31):
        mm(m)
        rd(m - 24)
        if m == 28: a(dma('a', 0))
        a(va[m - 28])
    sm0 = spread(softmax_ops(0), 7)
    for m in range(0, 12):
        mm(m)
        if m < 8: rd(m + 8)
        if m in (0, 4, 8): a(dma('a', 1 + m // 4))
        if m >= 9:
            for t in sm0[m - 9]: a(t)
    a(f's_add_u32 s{sOFA}, s{sOFA}, s{sSTA}')
    a(f's_add_u32 m0, s{sPREV}, s{sW4K}')
    a('s_waitcnt vmcnt(4) lgkmcnt(0)')
    q.clear()
    a('s_barrier')
    for m in range(16, 20): rd(m)
    a(f's_mov_b32 s{sPREV}, s{sCUR}')
    for t in next_slot(sCUR, sCUR): a(t)
    for m in range(12, 16):
        mm(m)
        rd(m + 8)
        if m == 12: a(dma('b', 0))
        for t in sm0[m - 9]: a(t)
    a(f'v_cmp_nge_f32 vcc, s{sTHR}, v{vTS}')
    a('s_cbranch_vccnz L_slow0')
    a.label('L_back0')
    a(f'v_add_f32 v{vSUM}, v{vSUM}, v{vTS}')
    sm1 = spread(softmax_ops(1), 7)
    for m in range(16, 24):
        mm(m)
        rd(m + 8)
        if m in (16, 20): a(dma('b', 1 + (m - 16) // 4))
        if m >= 17:
            for t in sm1[m - 17]: a(t)
    a(f'v_cmp_nge_f32 vcc, s{sTHR}, v{vTS}')
    a('s_cbranch_vccnz L_slow1')
    a.label('L_back1')
    a(f'v_add_f32 v{vSUM}, v{vSUM}, v{vTS}')
    ka = spread(k_addr(), 4)
    for m in range(24, 28):
        mm(m)
        if m == 24: a(dma('b', 3))
        for t in ka[m - 24]: a(t)
    a(f's_add_u32 s{sOFB}, s{sOFB}, s{sSTA}')
    a(f's_sub_u32 s{sCNT}, s{sCNT}, 1')
    a(f's_cmp_lg_u32 s{sCNT}, 0')
    a('s_cbranch_scc1 L_aloop')
    stamp()
    a('s_waitcnt lgkmcnt(0)')
    q.clear()
    for m in (28, 29, 30, 31): mm(m)
    a(f'''
    v_mov_b32 v{vT}, v{vSUM}
    v_lshrrev_b32 v42, 5, v{vL}
    v_and_b32 v43, 15, v{vL}
    v_permlane32_swap_b32 v{vT}, v{vSUM}
    v_and_b32 v44, 31, v{vL}
    v_lshlrev_b32 v42, 1, v42
    v_add_f32 v{vSUM}, v{vSUM}, v{vT}
    v_rcp_f32 v{vSUM}, v{vSUM}
    v_xor_b32 v42, v42, v43
    v_lshlrev_b32 v42, 4, v42
    v_lshl_add_u32 v42, v44, 10, v42
    s_lshr_b32 s{sTMP}, s{sW}, 2
    s_lshl_b32 s{sTMP}, s{sTMP}, 15
    s_and_b32 s{sTMP2}, s{sW}, 3
    s_lshl_b32 s{sTMP2}, s{sTMP2}, 8
    s_add_u32 s{sTMP}, s{sTMP}, s{sTMP2}
    v_add_u32 v48, s{sTMP}, v42
    ''')
    for k in range(1, 8):
        dt, c2 = k >> 1, k & 1
        a(f'v_xor_b32 v{48+k}, {(4*dt+c2)*16}, v48')
    for dt in range(4):
        d = vO + dt * 16
        st = vS + dt * 8
        for i in range(16):
            a(f'v_mul_f32 v{d+i}, v{vSUM}, v{d+i}')
        for i in range(8):
            a(f'v_cvt_pk_bf16_f32 v{st+i}, v{d+2*i}, v{d+2*i+1}')
        for c2 in range(2):
            a(f'ds_write_b128 v{48+2*dt+c2}, v[{st+4*c2}:{st+4*c2+3}]')
    a(f's_mov_b32 s{sT}, s{sBP}')
    wphase('wo', 15, (None, None), 'L_oloop')
    stamp()
    a('s_waitcnt lgkmcnt(0)')
    q.clear()
    wtail()
    a(f'''
    v_lshlrev_b32 v41, 4, v{vL}
    s_lshl_b32 s{sOFF}, s2, 16
    s_lshl_b32 s{sTMP}, s{sW}, 13
    s_add_u32 s{sOFF}, s{sOFF}, s{sTMP}
    s_add_u32 s{sTMP}, s{sOFF}, 4096
    ''')
    for u in range(2):
        for t in range(2):
            d = vACC + (2 * t + u) * 16
            st = vO + (2 * t + u) * 8
            for i in range(8):
                a(f'v_cvt_pk_bf16_f32 v{st+i}, v{d+2*i}, v{d+2*i+1}')
            for c2 in range(2):
                so = sOFF if u == 0 else sTMP
                a(f'buffer_store_dwordx4 v[{st+4*c2}:{st+4*c2+3}], v41, s[{SRD_WS}:{SRD_WS+3}], s{so} offen offset:{(2*t+c2)*1024}')
    if stamps:
        a('s_waitcnt vmcnt(0)')
        stamp()
        n = nstamp[0]
        a('s_waitcnt lgkmcnt(0)')
        for k in range(n):
            a(f'v_mov_b32 v{48+k}, s{STAMP0+2*k}')
        for k in range(n, 8):
            a(f'v_mov_b32 v{48+k}, s{STAMP0}')
        a(f'''
        s_lshl_b32 s{sTMP}, s2, 3
        s_add_u32 s{sTMP}, s{sTMP}, s{sW}
        s_lshl_b32 s{sTMP}, s{sTMP}, 5
        s_add_u32 s{sTMP}, s{sTMP}, 0x8000000
        v_mov_b32 v41, 0
        v_cmp_eq_u32 vcc, 0, v{vL}
        s_and_saveexec_b64 s[78:79], vcc
        buffer_store_dwordx4 v[48:51], v41, s[{SRD_WS}:{SRD_WS+3}], s{sTMP} offen
        buffer_store_dwordx4 v[52:55], v41, s[{SRD_WS}:{SRD_WS+3}], s{sTMP} offen offset:16
        ''')
    a.label('L_exit')
    a('s_endpgm')

    for kt in range(2):
        S = vS + kt * 16
        a.label(f'L_slow{kt}')
        a('s_nop 7')
        a('s_nop 3')
        a(f'v_max3_f32 v{vT}, v{S}, v{S+1}, v{S+2}')
        a(f'v_max3_f32 v{vT+1}, v{S+3}, v{S+4}, v{S+5}')
        for i in (6, 10):
            a(f'v_max3_f32 v{vT}, v{vT}, v{S+i}, v{S+i+1}')
            a(f'v_max3_f32 v{vT+1}, v{vT+1}, v{S+i+2}, v{S+i+3}')
        a(f'v_max3_f32 v{vT}, v{vT}, v{S+14}, v{S+15}')
        a(f'v_max_f32 v{vT}, v{vT}, v{vT+1}')
        a(f'v_mov_b32 v{vT+1}, v{vT}')
        a(f'v_permlane32_swap_b32 v{vT}, v{vT+1}')
        a(f'v_max3_f32 v{vT}, v{vT}, v{vT+1}, s{sLO}')
        a(f'v_max_f32 v{vT+1}, 0, v{vT}')
        a(f'v_exp_f32 v{vT+1}, -v{vT+1}')
        for i in range(16 if kt else 32):
            a(f'v_sub_f32 v{S+i}, v{S+i}, v{vT}')
        for i in range(16):
            a(f'v_sub_f32 v{vNM+i}, v{vNM+i}, v{vT}')
        for i in range(64):
            a(f'v_mul_f32 v{vO+i}, v{vT+1}, v{vO+i}')
        a(f'v_mul_f32 v{vSUM}, v{vT+1}, v{vSUM}')
        for t in softmax_ops(kt): a(t)
        a(f's_mov_b32 s{sTHR}, {fbits(1024.0)}')
        a(f's_mov_b32 s{sLO}, 0')
        a(f's_branch L_back{kt}')

    kernel_begin(a, RED)
    a(f'''
    s_cmp_ge_u32 s2, 512
    s_cbranch_scc1 L_rexit
    s_load_dwordx2 s[4:5], s[0:1], 80
    s_load_dwordx2 s[8:9], s[0:1], 96
    v_and_b32 v1, 3, v0
    v_bfe_u32 v2, v0, 2, 1
    v_lshrrev_b32 v3, 3, v0
    v_lshlrev_b32 v4, 10, v1
    v_lshl_add_u32 v4, v2, 9, v4
    v_lshl_add_u32 v4, v3, 4, v4
    v_lshlrev_b32 v5, 11, v3
    v_lshl_add_u32 v5, v2, 6, v5
    v_lshl_add_u32 v5, v1, 4, v5
    s_lshr_b32 s12, s2, 4
    s_and_b32 s13, s2, 15
    s_lshl_b32 s14, s12, 19
    s_lshl_b32 s15, s13, 12
    s_add_u32 s14, s14, s15
    s_lshr_b32 s16, s12, 1
    s_lshl_b32 s16, s16, 17
    s_and_b32 s17, s12, 1
    s_lshl_b32 s17, s17, 10
    s_add_u32 s16, s16, s17
    s_and_b32 s17, s13, 1
    s_lshl_b32 s17, s17, 16
    s_add_u32 s16, s16, s17
    s_lshr_b32 s17, s13, 1
    s_lshl_b32 s17, s17, 7
    s_add_u32 s16, s16, s17
    s_mov_b32 s6, 0x200000
    s_mov_b32 s7, 0x00020000
    s_mov_b32 s10, 0x10000000
    s_mov_b32 s11, 0x00020000
    s_mov_b32 s18, 0xffff0000
    s_waitcnt lgkmcnt(0)
    ''')
    for g in range(8):
        a(f'buffer_load_dwordx4 v[{8+4*g}:{11+4*g}], v4, s[8:11], s14 offen')
        if g < 7: a('s_add_u32 s14, s14, 65536')
    for g in range(8):
        a(f's_waitcnt vmcnt({7-g})')
        for i in range(4):
            r = 8 + 4 * g + i
            if g == 0:
                a(f'v_lshlrev_b32 v{40+2*i}, 16, v{r}')
                a(f'v_and_b32 v{41+2*i}, s18, v{r}')
            else:
                a(f'v_lshlrev_b32 v6, 16, v{r}')
                a(f'v_and_b32 v7, s18, v{r}')
                a(f'v_add_f32 v{40+2*i}, v{40+2*i}, v6')
                a(f'v_add_f32 v{41+2*i}, v{41+2*i}, v7')
    for i in range(4):
        a(f'v_cvt_pk_bf16_f32 v{48+i}, v{40+2*i}, v{41+2*i}')
    a('buffer_store_dwordx4 v[48:51], v5, s[4:7], s16 offen')
    a.label('L_rexit')
    a('s_endpgm')

    lines, n = hz.fix(a.lines, verbose='-v' in sys.argv)
    print('hazard nops inserted (states):', n)
    body = '\n'.join(lines) + '\n'
    return file_text([(NAME, 256, 512, 163840), (RED, 512, 256, 0)], body,
                     [descriptor(NAME, 256, 256), descriptor(RED, 56, 56, 24)])

if __name__ == '__main__':
    open('k1.s', 'w').write(gen(stamps=False))
    open('k1s.s', 'w').write(gen(stamps=True))
```

```python
import sys, struct
from asmlib import *
import hz

BASE = 'concat_heads__gqa_block_cached__gqa_block_cached__near_ridge'
NAME = BASE + '_kernel'
RED = 'gqa_reduce_kernel'

def fbits(x):
    return '0x%08x' % struct.unpack('<I', struct.pack('<f', x))[0]

RING = 65536
SLOT = 32768
RING_END = RING + 3 * SLOT

sW, sG, sIDX, sBLK, sBP = 3, 4, 5, 6, 7
sCUR, sPREV, sCNT, sT, sOFF, sTMP, sX, sW4K = 8, 9, 10, 11, 12, 13, 14, 15
SRD_K, SRD_V, SRD_WQ, SRD_WO, SRD_WS, SRD_X = 44, 48, 52, 56, 60, 64
sWB, sOFA, sOFB, sTHR, sLO, sSC, sNXT, sTMP2, sSTA = 68, 69, 70, 71, 72, 73, 74, 75, 76
STAMP0 = 80

vL = 1
vDW, vDA, vDB = 2, 6, 10
vXB, vWB, vWC, vXC = 14, 15, 17, 19
vKB, vVB, vKC, vVC = 21, 22, 26, 34
vSUM, vTS, vT = 38, 39, 41
vE = 48
vO, vS, vQ, vNM, vP, vF = 64, 128, 160, 192, 208, 224
vACC = 128

class Q:
    def __init__(self, a):
        self.a = a; self.q = []
    def issue(self, tag, text):
        self.a(text); self.q.append(tag)
    def wait(self, tag, extra=''):
        idx = [i for i, t in enumerate(self.q) if t == tag]
        if not idx:
            return
        n = len(self.q) - 1 - idx[-1]
        assert n <= 15, n
        self.a(f's_waitcnt lgkmcnt({n})')
        self.q = self.q[idx[-1] + 1:]
    def clear(self):
        self.q = []

def gen(stamps=False, nt_w=True, dbg=None, wmode='', early=False):
    a = Asm()
    nstamp = [0]
    def stamp():
        if stamps:
            k = STAMP0 + 2 * nstamp[0]
            a(f's_memrealtime s[{k}:{k+1}]')
            nstamp[0] += 1
    kernel_begin(a, NAME)
    a(f'''
    s_cmp_ge_u32 s2, 256
    s_cbranch_scc1 L_exit
    s_load_dwordx16 s[16:31], s[0:1], 0
    s_load_dwordx8 s[32:39], s[0:1], 64
    s_load_dwordx2 s[40:41], s[0:1], 96
    ''')
    stamp()
    a(f'''
    v_lshrrev_b32 v2, 6, v0
    v_and_b32 v{vL}, 63, v0
    s_and_b32 s{sG}, s2, 7
    v_readfirstlane_b32 s{sW}, v2
    s_lshr_b32 s{sIDX}, s2, 3
    s_and_b32 s{sBLK}, s{sIDX}, 1
    s_lshr_b32 s{sBP}, s{sIDX}, 1
    s_lshl_b32 s{sW4K}, s{sW}, 12
    ''')
    a(f'''
    s_and_b32 s{sTMP}, s{sW}, 1
    s_lshl_b32 s{sTMP}, s{sTMP}, 3
    v_xor_b32 v48, s{sTMP}, v{vL}
    v_lshlrev_b32 v48, 4, v48
    ''')
    for j in range(1, 8):
        a(f'v_xor_b32 v{48+j}, {j*16}, v48')
    a(f'v_lshlrev_b32 v{vDW}, 4, v{vL}')
    for j in range(1, 4):
        swz = ((j & 2) << 2) | ((j & 1) << 1)
        a(f'v_xor_b32 v{vDW+j}, {swz*16}, v{vDW}')
        a(f'v_add_u32 v{vDW+j}, {j*7168}, v{vDW+j}')
    a(f'''
    s_lshl_b32 s{sTMP}, s{sBP}, 16
    s_lshl_b32 s{sTMP2}, s{sW}, 13
    s_add_u32 s{sOFF}, s{sTMP}, s{sTMP2}
    s_lshl_b32 s{sWB}, s{sG}, 10
    s_lshl_b32 s{sTMP}, s{sW}, 15
    s_add_u32 s{sWB}, s{sWB}, s{sTMP}
    s_mov_b32 m0, s{sTMP2}
    s_waitcnt lgkmcnt(0)
    s_cmp_eq_u32 s{sBLK}, 0
    s_cselect_b32 s{SRD_X}, s16, s26
    s_cselect_b32 s{SRD_X+1}, s17, s27
    s_mov_b32 s{SRD_X+2}, 0x100000
    s_mov_b32 s{SRD_X+3}, 0x00020000
    s_cselect_b32 s{SRD_WQ}, s22, s32
    s_cselect_b32 s{SRD_WQ+1}, s23, s33
    s_mov_b32 s{SRD_WQ+2}, 0x400000
    s_mov_b32 s{SRD_WQ+3}, 0x00020000
    ''')
    wfl = ' nt' if nt_w else ''
    def x_dma():
        a(f's_mov_b32 m0, s{sTMP2}')
        a('s_nop 0')
        for j in range(4):
            a(f'buffer_load_dwordx4 v{48+j}, s[{SRD_X}:{SRD_X+3}], s{sOFF} offen offset:{j*1024} lds')
        a(f's_add_u32 m0, s{sTMP2}, 4096')
        a(f's_add_u32 s{sOFF}, s{sOFF}, 4096')
        for j in range(4):
            a(f'buffer_load_dwordx4 v{52+j}, s[{SRD_X}:{SRD_X+3}], s{sOFF} offen offset:{j*1024} lds')
    def w_dma_first(t):
        a(f'''
        s_add_u32 s{sTMP}, s{sBP}, {t}
        s_and_b32 s{sTMP}, s{sTMP}, 15
        s_lshl_b32 s{sTMP}, s{sTMP}, 18
        s_add_u32 s{sTMP}, s{sTMP}, s{sWB}
        s_add_u32 m0, s{sW4K}, {RING + t*SLOT}
        s_nop 0
        ''')
        for j in range(4):
            a(f'buffer_load_dwordx4 v{vDW+j}, s[{SRD_WQ}:{SRD_WQ+3}], s{sTMP} offen offset:{j*1024}{wfl} lds')
    w_dma_first(0)
    x_dma()
    w_dma_first(1)
    a(f'''
    s_cmp_eq_u32 s{sBLK}, 0
    s_cselect_b32 s{SRD_K}, s18, s28
    s_cselect_b32 s{SRD_K+1}, s19, s29
    s_mov_b32 s{SRD_K+2}, 0x2000000
    s_mov_b32 s{SRD_K+3}, 0x00020000
    s_cselect_b32 s{SRD_V}, s20, s30
    s_cselect_b32 s{SRD_V+1}, s21, s31
    s_mov_b32 s{SRD_V+2}, 0x2000000
    s_mov_b32 s{SRD_V+3}, 0x00020000
    s_cselect_b32 s{SRD_WO}, s24, s34
    s_cselect_b32 s{SRD_WO+1}, s25, s35
    s_mov_b32 s{SRD_WO+2}, 0x400000
    s_mov_b32 s{SRD_WO+3}, 0x00020000
    s_mov_b32 s{SRD_WS}, s40
    s_mov_b32 s{SRD_WS+1}, s41
    s_mov_b32 s{SRD_WS+2}, 0x10000000
    s_mov_b32 s{SRD_WS+3}, 0x00020000
    ''')
    a(f'''
    s_lshr_b32 s{sTMP}, s{sW}, 2
    s_lshl_b32 s{sOFA}, s{sBP}, 1
    s_add_u32 s{sOFA}, s{sOFA}, s{sTMP}
    s_lshl_b32 s{sOFA}, s{sOFA}, 3
    s_add_u32 s{sOFA}, s{sOFA}, s{sG}
    s_lshl_b32 s{sOFA}, s{sOFA}, 17
    s_and_b32 s{sTMP}, s{sW}, 3
    s_lshl_b32 s{sTMP}, s{sTMP}, 12
    s_add_u32 s{sOFA}, s{sOFA}, s{sTMP}
    s_mov_b32 s{sOFB}, s{sOFA}
    s_mov_b32 s{sSTA}, 16384
    ''')
    a(f'''
    v_lshrrev_b32 v41, 5, v{vL}
    v_lshrrev_b32 v42, 4, v{vL}
    v_and_b32 v43, 15, v{vL}
    v_and_b32 v44, 31, v{vL}
    v_bfe_u32 v45, v{vL}, 2, 2
    ''')
    a(f'''
    v_xor_b32 v46, v43, v42
    v_lshlrev_b32 v46, 4, v46
    v_lshl_add_u32 v{vDA}, v42, 8, v46
    v_xor_b32 v{vDA+1}, 64, v{vDA}
    v_xor_b32 v{vDA+2}, 0x80, v{vDA}
    v_xor_b32 v{vDA+3}, 0xc0, v{vDA}
    ''')
    a(f'''
    v_lshlrev_b32 v46, 2, v42
    v_xor_b32 v46, v43, v46
    v_lshlrev_b32 v46, 4, v46
    v_lshl_add_u32 v{vDB}, v42, 8, v46
    v_mov_b32 v{vDB+1}, v{vDB}
    v_mov_b32 v{vDB+2}, v{vDB}
    v_mov_b32 v{vDB+3}, v{vDB}
    ''')
    a(f'''
    v_xor_b32 v46, v41, v43
    v_lshlrev_b32 v46, 4, v46
    v_lshl_add_u32 v{vXB}, v44, 10, v46
    ''')
    a(f'''
    s_lshr_b32 s{sTMP}, s{sW}, 2
    s_lshl_b32 s{sTMP}, s{sTMP}, 14
    v_lshl_add_u32 v{vKB}, v44, 8, v46
    v_add_u32 v{vKB}, s{sTMP}, v{vKB}
    ''')
    a(f'''
    v_and_b32 v46, 1, v42
    v_lshlrev_b32 v46, 4, v46
    v_bfe_u32 v47, v{vL}, 1, 1
    v_lshl_add_u32 v46, v47, 3, v46
    v_and_b32 v47, 1, v{vL}
    ''')
    a(f'''
    v_lshl_add_u32 v56, v47, 6, v46
    s_lshl_b32 s{sTMP2}, s{sW}, 7
    v_add_u32 v56, s{sTMP2}, v56
    v_and_b32 v57, 2, v45
    v_lshlrev_b32 v57, 6, v57
    v_and_b32 v58, 1, v45
    v_lshl_or_b32 v57, v58, 5, v57
    v_xor_b32 v56, v56, v57
    v_lshl_add_u32 v58, v41, 3, v45
    v_lshl_add_u32 v{vWB}, v58, 10, v56
    v_xor_b32 v{vWB+1}, 32, v{vWB}
    ''')
    a(f'''
    v_lshl_add_u32 v56, v47, 5, v46
    v_lshl_add_u32 v56, v45, 6, v56
    v_lshl_add_u32 v58, v41, 2, v45
    v_lshl_add_u32 v56, v58, 8, v56
    v_add_u32 v{vVB}, s{sTMP}, v56
    v_xor_b32 v{vVB+1}, 64, v{vVB}
    v_xor_b32 v{vVB+2}, 0x80, v{vVB}
    v_xor_b32 v{vVB+3}, 0xc0, v{vVB}
    ''')
    a(f'''
    s_mov_b32 s{sCUR}, {RING}
    s_mov_b32 s{sPREV}, {RING + 2*SLOT}
    s_mov_b32 s{sT}, s{sBP}
    s_mov_b32 s{sSC}, {fbits(128 ** -0.5 * 1.4426950408889634)}
    s_mov_b32 s{sTHR}, {fbits(-1.0)}
    s_mov_b32 s{sLO}, 0xff800000
    ''')

    q = Q(a)
    def next_slot(dst, src):
        return [f's_add_u32 s{dst}, s{src}, {SLOT}',
                f's_cmp_eq_u32 s{dst}, {RING_END}',
                f's_cselect_b32 s{dst}, {RING}, s{dst}']

    def w_addr_setup():
        return [f's_lshl_b32 s{sX}, s{sT}, 6',
                f'v_add_u32 v{vWC}, s{sCUR}, v{vWB}',
                f'v_add_u32 v{vWC+1}, s{sCUR}, v{vWB+1}',
                f'v_xor_b32 v{vXC}, s{sX}, v{vXB}',
                f'v_xor_b32 v{vXC+1}, 32, v{vXC}']

    def frag_reads(F, s):
        A = lambda t: [f'ds_read_b64_tr_b16 v[{F+4*t+2*e}:{F+4*t+2*e+1}], v{vWC+t} offset:{(16*s+4*e)*1024}' for e in range(2)]
        B = lambda u: [f'ds_read_b128 v[{F+8+4*u}:{F+8+4*u+3}], v{vXC+s} offset:{u*32768}']
        return A, B

    def pm(F, t, u, zero=False):
        d = vACC + (2 * t + u) * 16
        c = '0' if zero else f'v[{d}:{d+15}]'
        return f'v_mfma_f32_32x32x16_bf16 v[{d}:{d+15}], v[{F+4*t}:{F+4*t+3}], v[{F+8+4*u}:{F+8+4*u+3}], {c}'

    def dma(kind, j):
        if kind == 'wq':
            return f'buffer_load_dwordx4 v{vDW+j}, s[{SRD_WQ}:{SRD_WQ+3}], s{sOFF} offen offset:{j*1024}{wfl} lds'
        if kind == 'wo':
            return f'buffer_load_dwordx4 v{vDW+j}, s[{SRD_WO}:{SRD_WO+3}], s{sOFF} offen offset:{j*1024}{wfl} lds'
        if kind == 'a':
            return f'buffer_load_dwordx4 v{vDA+j}, s[{SRD_K}:{SRD_K+3}], s{sOFA} offen offset:{j*1024} nt lds'
        if kind == 'b':
            return f'buffer_load_dwordx4 v{vDB+j}, s[{SRD_V}:{SRD_V+3}], s{sOFB} offen offset:{j*1024} nt lds'

    def wstep(first, kind, vm, shift):
        F0, F1 = vF, vF + 16
        pre = []
        if 'nodma' in wmode and kind in ('wq', 'wo'):
            kind = None
        if kind in ('wq', 'wo'):
            pre = [f's_add_u32 s{sOFF}, s{sT}, 2', f's_and_b32 s{sOFF}, s{sOFF}, 15',
                   f's_lshl_b32 s{sOFF}, s{sOFF}, {shift}', f's_add_u32 s{sOFF}, s{sOFF}, s{sWB}']
        if kind:
            pre.append(f's_add_u32 m0, s{sPREV}, s{sW4K}')
        for p in pre: a(p)
        a(f's_waitcnt vmcnt({vm}) lgkmcnt(0)')
        q.clear()
        a('s_barrier')
        if first: stamp(); a('s_waitcnt lgkmcnt(0)')
        nc = 'nocomp' in wmode
        def M(x):
            if not nc: a(x)
        def R(tag, x):
            if not nc: q.issue(tag, x)
        def D(j):
            if kind and not early: a(dma(kind, j))
        A, B = frag_reads(F0, 0)
        for t in A(0) + B(0) + B(1) + A(1): R('f0', t)
        if kind and early:
            for j in range(4): a(dma(kind, j))
        A1, B1 = frag_reads(F1, 1)
        if not first:
            M(pm(F1, 0, 0))
            D(0)
            M(pm(F1, 0, 1))
            for t in A1(0): R('f1', t)
            M(pm(F1, 1, 0))
            for t in B1(0): R('f1', t)
            D(1)
            M(pm(F1, 1, 1))
            for t in B1(1) + A1(1): R('f1', t)
        else:
            for t in A1(0) + B1(0) + B1(1) + A1(1): R('f1', t)
            D(0); D(1)
        a(f's_mov_b32 s{sPREV}, s{sCUR}')
        for t in next_slot(sCUR, sCUR): a(t)
        a(f's_add_u32 s{sT}, s{sT}, 1')
        a(f's_and_b32 s{sT}, s{sT}, 15')
        q.wait('f0')
        M(pm(F0, 0, 0, first))
        D(2)
        M(pm(F0, 0, 1, first))
        su = w_addr_setup()
        for t in su[:3]: a(t)
        M(pm(F0, 1, 0, first))
        D(3)
        for t in su[3:]: a(t)
        M(pm(F0, 1, 1, first))

    def wtail():
        F1 = vF + 16
        for t in range(2):
            for u in range(2):
                a(pm(F1, t, u))

    def wphase(kind, shift, last_kinds, lbl):
        for t in w_addr_setup(): a(t)
        wstep(True, kind, 4, shift)
        a(f's_mov_b32 s{sCNT}, 13')
        a.label(lbl)
        wstep(False, kind, 4, shift)
        a(f's_sub_u32 s{sCNT}, s{sCNT}, 1')
        a(f's_cmp_lg_u32 s{sCNT}, 0')
        a(f's_cbranch_scc1 {lbl}')
        wstep(False, last_kinds[0], 4, shift)
        wstep(False, last_kinds[1], 4 if last_kinds[0] else 0, shift)

    wphase('wq', 18, ('a', 'b'), 'L_qloop')
    a(f's_add_u32 s{sOFA}, s{sOFA}, s{sSTA}')
    a(f's_add_u32 s{sOFB}, s{sOFB}, s{sSTA}')
    stamp()
    a('s_waitcnt lgkmcnt(0)')
    q.clear()
    a('s_barrier')
    wtail()
    a(f'''
    v_lshrrev_b32 v41, 5, v{vL}
    v_and_b32 v43, 15, v{vL}
    v_and_b32 v44, 31, v{vL}
    s_and_b32 s{sTMP}, s{sW}, 1
    s_lshl_b32 s{sTMP}, s{sTMP}, 3
    v_lshl_add_u32 v46, v41, 2, s{sTMP}
    v_xor_b32 v46, v46, v43
    v_lshlrev_b32 v46, 4, v46
    v_lshl_add_u32 v46, v44, 10, v46
    s_lshr_b32 s{sTMP}, s{sW}, 1
    s_lshl_b32 s{sTMP}, s{sTMP}, 8
    v_add_u32 v56, s{sTMP}, v46
    v_xor_b32 v57, 16, v56
    v_xor_b32 v58, 32, v56
    v_xor_b32 v59, 48, v56
    ''')
    for j in range(1, 4):
        a(f'v_subrev_u32 v{vDW+j}, {j*7168}, v{vDW+j}')
    a(f'''
    s_lshl_b32 s{sWB}, s{sG}, 19
    s_add_u32 s{sWB}, s{sWB}, s{sW4K}
    ''')
    for t in range(2):
        for u in range(2):
            d = vACC + (2 * t + u) * 16
            st = vO + (2 * t + u) * 8
            for i in range(16):
                a(f'v_mul_f32 v{d+i}, s{sSC}, v{d+i}')
            for i in range(8):
                a(f'v_cvt_pk_bf16_f32 v{st+i}, v{d+2*i}, v{d+2*i+1}')
            for c2 in range(2):
                a(f'ds_write_b128 v{56+2*t+c2}, v[{st+4*c2}:{st+4*c2+3}] offset:{u*32768}')
    a(f'''
    s_lshr_b32 s{sTMP}, s{sW}, 2
    s_lshl_b32 s{sTMP}, s{sTMP}, 15
    s_and_b32 s{sTMP2}, s{sW}, 3
    s_lshl_b32 s{sTMP2}, s{sTMP2}, 8
    s_add_u32 s{sTMP}, s{sTMP}, s{sTMP2}
    v_add_u32 v48, s{sTMP}, v{vXB}
    ''')
    for s in range(1, 8):
        a(f'v_xor_b32 v{48+s}, {s*32}, v48')
    def k_addr():
        r = [f'v_add_u32 v{vKC}, s{sCUR}, v{vKB}']
        for s in range(1, 8):
            r.append(f'v_xor_b32 v{vKC+s}, {s*32}, v{vKC}')
        return r
    def v_addr():
        return [f'v_add_u32 v{vVC+d}, s{sCUR}, v{vVB+d}' for d in range(4)]
    for t in k_addr(): a(t)
    a('s_waitcnt lgkmcnt(0)')
    a('s_barrier')
    for s in range(8):
        a(f'ds_read_b128 v[{vQ+4*s}:{vQ+4*s+3}], v{48+s}')
    for i in range(64): a(f'v_mov_b32 v{vO+i}, 0')
    for i in range(16): a(f'v_mov_b32 v{vNM+i}, 0')
    for i in range(16): a(f'v_mov_b32 v{vP+i}, 0')
    for i in range(16): a(f'v_mov_b32 v{vF+16+i}, 0')
    a(f'v_mov_b32 v{vSUM}, 0')
    a(f's_mov_b32 s{sCNT}, 8')

    def rd(m):
        F = vF + (m & 7) * 4
        if m < 16:
            kt, s = m >> 3, m & 7
            q.issue(m, f'ds_read_b128 v[{F}:{F+3}], v{vKC+s} offset:{kt*8192}')
        else:
            kt, c, dt = (m - 16) >> 3, ((m - 16) >> 2) & 1, m & 3
            for e in range(2):
                q.issue(m, f'ds_read_b64_tr_b16 v[{F+2*e}:{F+2*e+1}], v{vVC+dt} offset:{(32*kt+16*c+8*e)*256}')
    def mm(m):
        F = vF + (m & 7) * 4
        q.wait(m)
        if m < 16:
            kt, s = m >> 3, m & 7
            d = vS + kt * 16
            c = vNM if s == 0 else d
            a(f'v_mfma_f32_32x32x16_bf16 v[{d}:{d+15}], v[{F}:{F+3}], v[{vQ+4*s}:{vQ+4*s+3}], v[{c}:{c+15}]')
        else:
            kt, c, dt = (m - 16) >> 3, ((m - 16) >> 2) & 1, m & 3
            d = vO + dt * 16
            p = vP + kt * 8 + c * 4
            a(f'v_mfma_f32_32x32x16_bf16 v[{d}:{d+15}], v[{F}:{F+3}], v[{p}:{p+3}], v[{d}:{d+15}]')
    def softmax_ops(kt):
        S = vS + kt * 16
        ops = []
        for i in range(0, 16, 2):
            e0, e1 = vE + (i & 7), vE + ((i + 1) & 7)
            ops.append(f'v_exp_f32 v{e0}, v{S+i}')
            ops.append(f'v_exp_f32 v{e1}, v{S+i+1}')
            if i >= 2:
                p0, p1 = vE + ((i - 2) & 7), vE + ((i - 1) & 7)
                ops += fin(kt, i - 2, p0, p1)
        ops += fin(kt, 14, vE + 6, vE + 7)
        ops.append(f'v_add_f32 v{vTS}, v{vTS}, v{vTS+1}')
        return ops
    def fin(kt, i, p0, p1):
        r = []
        if i == 0:
            r.append(f'v_cvt_pk_bf16_f32 v{vP+kt*8}, v{p0}, v{p1}')
        elif i == 2:
            r.append(f'v_add_f32 v{vTS}, v{vE}, v{p0}')
            r.append(f'v_add_f32 v{vTS+1}, v{vE+1}, v{p1}')
            r.append(f'v_cvt_pk_bf16_f32 v{vP+kt*8+1}, v{p0}, v{p1}')
        else:
            r.append(f'v_add_f32 v{vTS}, v{vTS}, v{p0}')
            r.append(f'v_add_f32 v{vTS+1}, v{vTS+1}, v{p1}')
            r.append(f'v_cvt_pk_bf16_f32 v{vP+kt*8+i//2}, v{p0}, v{p1}')
        return r
    def spread(ops, n):
        out = []
        k = 0
        for i in range(n):
            e = (len(ops) * (i + 1)) // n
            out.append(ops[k:e]); k = e
        return out

    a.label('L_aloop')
    a(f's_cmp_lg_u32 s{sCNT}, 1')
    a('s_cbranch_scc1 L_anorm')
    for j in range(4):
        a(f's_mov_b32 s{SRD_K+j}, s{SRD_WO+j}')
        a(f's_mov_b32 s{SRD_V+j}, s{SRD_WO+j}')
        a(f'v_mov_b32 v{vDA+j}, v{vDW+j}')
        a(f'v_mov_b32 v{vDB+j}, v{vDW+j}')
    a(f'''
    s_lshl_b32 s{sOFA}, s{sBP}, 15
    s_add_u32 s{sOFA}, s{sOFA}, s{sWB}
    s_add_u32 s{sOFB}, s{sBP}, 1
    s_and_b32 s{sOFB}, s{sOFB}, 15
    s_lshl_b32 s{sOFB}, s{sOFB}, 15
    s_add_u32 s{sOFB}, s{sOFB}, s{sWB}
    ''')
    a.label('L_anorm')
    a(f's_add_u32 m0, s{sPREV}, s{sW4K}')
    a('s_waitcnt vmcnt(4) lgkmcnt(0)')
    q.clear()
    a('s_barrier')
    for m in range(4): rd(m)
    a(f's_mov_b32 s{sPREV}, s{sCUR}')
    for t in next_slot(sCUR, sCUR): a(t)
    va = v_addr()
    for m in (28, 29, 30, 31):
        mm(m)
        rd(m - 24)
        if m == 28: a(dma('a', 0))
        a(va[m - 28])
    sm0 = spread(softmax_ops(0), 7)
    for m in range(0, 12):
        mm(m)
        if m < 8: rd(m + 8)
        if m in (0, 4, 8): a(dma('a', 1 + m // 4))
        if m >= 9:
            for t in sm0[m - 9]: a(t)
    a(f's_add_u32 s{sOFA}, s{sOFA}, s{sSTA}')
    a(f's_add_u32 m0, s{sPREV}, s{sW4K}')
    a('s_waitcnt vmcnt(4) lgkmcnt(0)')
    q.clear()
    a('s_barrier')
    for m in range(16, 20): rd(m)
    a(f's_mov_b32 s{sPREV}, s{sCUR}')
    for t in next_slot(sCUR, sCUR): a(t)
    for m in range(12, 16):
        mm(m)
        rd(m + 8)
        if m == 12: a(dma('b', 0))
        for t in sm0[m - 9]: a(t)
    a(f'v_cmp_nge_f32 vcc, s{sTHR}, v{vTS}')
    a('s_cbranch_vccnz L_slow0')
    a.label('L_back0')
    a(f'v_add_f32 v{vSUM}, v{vSUM}, v{vTS}')
    sm1 = spread(softmax_ops(1), 7)
    for m in range(16, 24):
        mm(m)
        rd(m + 8)
        if m in (16, 20): a(dma('b', 1 + (m - 16) // 4))
        if m >= 17:
            for t in sm1[m - 17]: a(t)
    a(f'v_cmp_nge_f32 vcc, s{sTHR}, v{vTS}')
    a('s_cbranch_vccnz L_slow1')
    a.label('L_back1')
    a(f'v_add_f32 v{vSUM}, v{vSUM}, v{vTS}')
    ka = spread(k_addr(), 4)
    for m in range(24, 28):
        mm(m)
        if m == 24: a(dma('b', 3))
        for t in ka[m - 24]: a(t)
    a(f's_add_u32 s{sOFB}, s{sOFB}, s{sSTA}')
    a(f's_sub_u32 s{sCNT}, s{sCNT}, 1')
    a(f's_cmp_lg_u32 s{sCNT}, 0')
    a('s_cbranch_scc1 L_aloop')
    stamp()
    a('s_waitcnt lgkmcnt(0)')
    q.clear()
    for m in (28, 29, 30, 31): mm(m)
    a(f'''
    v_mov_b32 v{vT}, v{vSUM}
    v_lshrrev_b32 v42, 5, v{vL}
    v_and_b32 v43, 15, v{vL}
    v_permlane32_swap_b32 v{vT}, v{vSUM}
    v_and_b32 v44, 31, v{vL}
    v_lshlrev_b32 v42, 1, v42
    v_add_f32 v{vSUM}, v{vSUM}, v{vT}
    v_rcp_f32 v{vSUM}, v{vSUM}
    v_xor_b32 v42, v42, v43
    v_lshlrev_b32 v42, 4, v42
    v_lshl_add_u32 v42, v44, 10, v42
    s_lshr_b32 s{sTMP}, s{sW}, 2
    s_lshl_b32 s{sTMP}, s{sTMP}, 15
    s_and_b32 s{sTMP2}, s{sW}, 3
    s_lshl_b32 s{sTMP2}, s{sTMP2}, 8
    s_add_u32 s{sTMP}, s{sTMP}, s{sTMP2}
    v_add_u32 v48, s{sTMP}, v42
    ''')
    for k in range(1, 8):
        dt, c2 = k >> 1, k & 1
        a(f'v_xor_b32 v{48+k}, {(4*dt+c2)*16}, v48')
    for dt in range(4):
        d = vO + dt * 16
        st = vS + dt * 8
        for i in range(16):
            a(f'v_mul_f32 v{d+i}, v{vSUM}, v{d+i}')
        for i in range(8):
            a(f'v_cvt_pk_bf16_f32 v{st+i}, v{d+2*i}, v{d+2*i+1}')
        for c2 in range(2):
            a(f'ds_write_b128 v{48+2*dt+c2}, v[{st+4*c2}:{st+4*c2+3}]')
    a(f's_mov_b32 s{sT}, s{sBP}')
    wphase('wo', 15, (None, None), 'L_oloop')
    stamp()
    a('s_waitcnt lgkmcnt(0)')
    q.clear()
    wtail()
    a(f'''
    v_lshlrev_b32 v41, 4, v{vL}
    s_lshl_b32 s{sOFF}, s2, 16
    s_lshl_b32 s{sTMP}, s{sW}, 13
    s_add_u32 s{sOFF}, s{sOFF}, s{sTMP}
    s_add_u32 s{sTMP}, s{sOFF}, 4096
    ''')
    for u in range(2):
        for t in range(2):
            d = vACC + (2 * t + u) * 16
            st = vO + (2 * t + u) * 8
            for i in range(8):
                a(f'v_cvt_pk_bf16_f32 v{st+i}, v{d+2*i}, v{d+2*i+1}')
            for c2 in range(2):
                so = sOFF if u == 0 else sTMP
                a(f'buffer_store_dwordx4 v[{st+4*c2}:{st+4*c2+3}], v41, s[{SRD_WS}:{SRD_WS+3}], s{so} offen offset:{(2*t+c2)*1024}')
    if stamps:
        a('s_waitcnt vmcnt(0)')
        stamp()
        n = nstamp[0]
        a('s_waitcnt lgkmcnt(0)')
        for k in range(n):
            a(f'v_mov_b32 v{48+k}, s{STAMP0+2*k}')
        for k in range(n, 8):
            a(f'v_mov_b32 v{48+k}, s{STAMP0}')
        a(f'''
        s_lshl_b32 s{sTMP}, s2, 3
        s_add_u32 s{sTMP}, s{sTMP}, s{sW}
        s_lshl_b32 s{sTMP}, s{sTMP}, 5
        s_add_u32 s{sTMP}, s{sTMP}, 0x8000000
        v_mov_b32 v41, 0
        v_cmp_eq_u32 vcc, 0, v{vL}
        s_and_saveexec_b64 s[78:79], vcc
        buffer_store_dwordx4 v[48:51], v41, s[{SRD_WS}:{SRD_WS+3}], s{sTMP} offen
        buffer_store_dwordx4 v[52:55], v41, s[{SRD_WS}:{SRD_WS+3}], s{sTMP} offen offset:16
        ''')
    a.label('L_exit')
    a('s_endpgm')

    for kt in range(2):
        S = vS + kt * 16
        a.label(f'L_slow{kt}')
        a('s_nop 7')
        a('s_nop 3')
        a(f'v_max3_f32 v{vT}, v{S}, v{S+1}, v{S+2}')
        a(f'v_max3_f32 v{vT+1}, v{S+3}, v{S+4}, v{S+5}')
        for i in (6, 10):
            a(f'v_max3_f32 v{vT}, v{vT}, v{S+i}, v{S+i+1}')
            a(f'v_max3_f32 v{vT+1}, v{vT+1}, v{S+i+2}, v{S+i+3}')
        a(f'v_max3_f32 v{vT}, v{vT}, v{S+14}, v{S+15}')
        a(f'v_max_f32 v{vT}, v{vT}, v{vT+1}')
        a(f'v_mov_b32 v{vT+1}, v{vT}')
        a(f'v_permlane32_swap_b32 v{vT}, v{vT+1}')
        a(f'v_max3_f32 v{vT}, v{vT}, v{vT+1}, s{sLO}')
        a(f'v_max_f32 v{vT+1}, 0, v{vT}')
        a(f'v_exp_f32 v{vT+1}, -v{vT+1}')
        for i in range(16 if kt else 32):
            a(f'v_sub_f32 v{S+i}, v{S+i}, v{vT}')
        for i in range(16):
            a(f'v_sub_f32 v{vNM+i}, v{vNM+i}, v{vT}')
        for i in range(64):
            a(f'v_mul_f32 v{vO+i}, v{vT+1}, v{vO+i}')
        a(f'v_mul_f32 v{vSUM}, v{vT+1}, v{vSUM}')
        for t in softmax_ops(kt): a(t)
        a(f's_mov_b32 s{sTHR}, {fbits(1024.0)}')
        a(f's_mov_b32 s{sLO}, 0')
        a(f's_branch L_back{kt}')

    kernel_begin(a, RED)
    a(f'''
    s_cmp_ge_u32 s2, 512
    s_cbranch_scc1 L_rexit
    s_load_dwordx2 s[4:5], s[0:1], 80
    s_load_dwordx2 s[8:9], s[0:1], 96
    v_and_b32 v1, 3, v0
    v_bfe_u32 v2, v0, 2, 1
    v_lshrrev_b32 v3, 3, v0
    v_lshlrev_b32 v4, 10, v1
    v_lshl_add_u32 v4, v2, 9, v4
    v_lshl_add_u32 v4, v3, 4, v4
    v_lshlrev_b32 v5, 11, v3
    v_lshl_add_u32 v5, v2, 6, v5
    v_lshl_add_u32 v5, v1, 4, v5
    s_lshr_b32 s12, s2, 4
    s_and_b32 s13, s2, 15
    s_lshl_b32 s14, s12, 19
    s_lshl_b32 s15, s13, 12
    s_add_u32 s14, s14, s15
    s_lshr_b32 s16, s12, 1
    s_lshl_b32 s16, s16, 17
    s_and_b32 s17, s12, 1
    s_lshl_b32 s17, s17, 10
    s_add_u32 s16, s16, s17
    s_and_b32 s17, s13, 1
    s_lshl_b32 s17, s17, 16
    s_add_u32 s16, s16, s17
    s_lshr_b32 s17, s13, 1
    s_lshl_b32 s17, s17, 7
    s_add_u32 s16, s16, s17
    s_mov_b32 s6, 0x200000
    s_mov_b32 s7, 0x00020000
    s_mov_b32 s10, 0x10000000
    s_mov_b32 s11, 0x00020000
    s_mov_b32 s18, 0xffff0000
    s_waitcnt lgkmcnt(0)
    ''')
    for g in range(8):
        a(f'buffer_load_dwordx4 v[{8+4*g}:{11+4*g}], v4, s[8:11], s14 offen')
        if g < 7: a('s_add_u32 s14, s14, 65536')
    for g in range(8):
        a(f's_waitcnt vmcnt({7-g})')
        for i in range(4):
            r = 8 + 4 * g + i
            if g == 0:
                a(f'v_lshlrev_b32 v{40+2*i}, 16, v{r}')
                a(f'v_and_b32 v{41+2*i}, s18, v{r}')
            else:
                a(f'v_lshlrev_b32 v6, 16, v{r}')
                a(f'v_and_b32 v7, s18, v{r}')
                a(f'v_add_f32 v{40+2*i}, v{40+2*i}, v6')
                a(f'v_add_f32 v{41+2*i}, v{41+2*i}, v7')
    for i in range(4):
        a(f'v_cvt_pk_bf16_f32 v{48+i}, v{40+2*i}, v{41+2*i}')
    a('buffer_store_dwordx4 v[48:51], v5, s[4:7], s16 offen')
    a.label('L_rexit')
    a('s_endpgm')

    lines, n = hz.fix(a.lines, verbose='-v' in sys.argv)
    print('hazard nops inserted (states):', n)
    body = '\n'.join(lines) + '\n'
    return file_text([(NAME, 256, 512, 163840), (RED, 512, 256, 0)], body,
                     [descriptor(NAME, 256, 256), descriptor(RED, 56, 56, 24)])

if __name__ == '__main__':
    open('k1.s', 'w').write(gen(stamps=False))
    V = {'s': {}, 'nocomp': dict(wmode='nocomp'), 'nodma': dict(wmode='nodma'), 'early': dict(early=True), 'plain': dict(nt_w=False), 'earlyplain': dict(early=True, nt_w=False)}
    for k, p in V.items():
        open(f'k1{k}.s', 'w').write(gen(stamps=True, **p))
```

```python
import sys
from asmlib import descriptor
def wrap(s, nrec=2048, red_waves=2048):
    old="""    s_load_dwordx2 s[8:9], s[0:1], 96
"""
    i=s.index('gqa_reduce_kernel:')
    head,tail=s[:i],s[i:]
    assert old in tail
    tail=tail.replace(old,old+"    s_memrealtime s[24:25]\n",1)
    old="L_rexit:\n"
    new="""    s_waitcnt vmcnt(0)
    s_memrealtime s[26:27]
    v_lshrrev_b32 v2, 6, v0
    v_lshlrev_b32 v2, 3, v2
    s_lshl_b32 s12, s2, 5
    s_add_u32 s12, s12, 0x8020000
    s_waitcnt lgkmcnt(0)
    v_mov_b32 v6, s24
    v_mov_b32 v7, s26
    buffer_store_dwordx2 v[6:7], v2, s[8:11], s12 offen
L_rexit:
"""
    tail=tail.replace(old,new,1)
    s=head+tail
    s=s.replace(".amdhsa_next_free_sgpr 24",".amdhsa_next_free_sgpr 40")
    lines=s.split('\n')
    last=max(i for i,l in enumerate(lines) if l.startswith('; @launch'))
    lines.insert(last+1,'; @launch kernel=gqa_fold_kernel grid=(2,1,1) block=(1024,1,1) lds=0')
    s='\n'.join(lines)
    k=""".globl gqa_fold_kernel
.p2align 8
.type gqa_fold_kernel,@function
gqa_fold_kernel:
    s_cmp_ge_u32 s2, 2
    s_cbranch_scc1 L_fexit
    s_load_dwordx2 s[8:9], s[0:1], 96
    s_load_dwordx2 s[20:21], s[0:1], 88
    s_mov_b32 s10, 0x10000000
    s_mov_b32 s11, 0x00020000
    s_mov_b32 s22, 64
    s_mov_b32 s23, 0x00020000
    s_lshl_b32 s3, s2, 10
    v_add_u32 v0, s3, v0
    v_lshlrev_b32 v1, 5, v0
    v_lshlrev_b32 v2, 3, v0
    s_mov_b32 s12, 0x8000000
    s_mov_b32 s13, 0x8020000
    s_waitcnt lgkmcnt(0)
    buffer_load_dwordx4 v[4:7], v1, s[8:11], s12 offen
    buffer_load_dwordx4 v[8:11], v1, s[8:11], s12 offen offset:16
    buffer_load_dwordx2 v[20:21], v2, s[8:11], s13 offen
    s_waitcnt vmcnt(0)
    v_mov_b32 v11, v21
"""
    for i in range(7):
        k+=f"    v_not_b32 v{12+i}, v{4+i}\n"
    k+="    v_not_b32 v19, v20\n    v_mov_b32 v3, 0\n"
    for i in range(16):
        k+=f"    buffer_atomic_umax v{4+i}, v3, s[20:23], 0 offen offset:{4*i}\n"
    k+="L_fexit:\n    s_endpgm\n"
    s=s.replace('.section .rodata,"a"\n',k+'.section .rodata,"a"\n')
    s+=descriptor('gqa_fold_kernel',24,24,32)
    return s
if __name__=='__main__':
    open(sys.argv[2],'w').write(wrap(open(sys.argv[1]).read()))
```

```python
import sys, struct
from asmlib import *
import hz

BASE = 'concat_heads__gqa_block_cached__gqa_block_cached__near_ridge'
NAME = BASE + '_kernel'
RED = 'gqa_reduce_kernel'

def fbits(x):
    return '0x%08x' % struct.unpack('<I', struct.pack('<f', x))[0]

KA, KB, VA, VB = 0, 49152, 98304, 131072
T8 = 8192

sW, sG, sIDX, sBLK, sBP = 3, 4, 5, 6, 7
sC, sSUB, sMASK, sPOS, sBEG, sPH = 8, 9, 10, 11, 12, 13
sT1, sT2 = 14, 15
SRD_K, SRD_V, SRD_WQ, SRD_WO, SRD_WS, SRD_X = 44, 48, 52, 56, 60, 64
sKV, sMK, sMV, sTHR, sRET, sWO, sQ8, sT3 = 68, 69, 70, 71, 72, 73, 74, 75
sSC = 76
sWB, sLM = 78, 79
sAKV, sAX, sAMK, sAMV = 96, 97, 98, 99
STAMP0 = 80

vL = 1
vAb, vA, vBb, vB = 2, 6, 10, 11
vKC, vVC, vDK, vDV, vDO = 12, 20, 24, 26, 27
vSUM, vTS, vE, vT = 29, 30, 32, 40
vQX, vLin, vDW, vKD4 = 48, 49, 50, 54
vOW = 12
F0, F1 = 64, 88
vO, vS, vQ, vNM, vP, vF = 64, 128, 160, 192, 208, 224
def acc(t, u): return (128 if u == 1 else 192) + 16 * t

class Q:
    def __init__(self, a):
        self.a = a; self.q = []
    def issue(self, tag, text):
        self.a(text); self.q.append(tag)
    def wait(self, tag):
        idx = [i for i, t in enumerate(self.q) if t == tag]
        if not idx:
            return
        n = len(self.q) - 1 - idx[-1]
        assert n <= 15, n
        self.a(f's_waitcnt lgkmcnt({n})')
        self.q = self.q[idx[-1] + 1:]
    def clear(self):
        self.q = []

def spread(ops, n):
    out = []; k = 0
    for i in range(n):
        e = (len(ops) * (i + 1)) // n
        out.append(ops[k:e]); k = e
    return out

def srd(b): return f's[{b}:{b+3}]'

def gen(stamps=False, park=True, pk=True, wq_fl=' nt', wo_fl='', kv_fl=' nt', st_fl=' sc1', LA=7, prio=None, cyc=False, nodma=False, nomfma=False, noread=False, qst=False):
    a = Asm()
    def stamp(k, force=False):
        if stamps and (force or not qst or k in (0, 1)):
            a(f's_mem{"" if cyc else "real"}time s[{STAMP0+2*k}:{STAMP0+2*k+1}]')
    kernel_begin(a, NAME)
    a(f'''
    s_cmp_ge_u32 s2, 256
    s_cbranch_scc1 L_exit
    s_load_dwordx16 s[16:31], s[0:1], 0
    s_load_dwordx8 s[32:39], s[0:1], 64
    s_load_dwordx2 s[40:41], s[0:1], 96
    ''')
    stamp(0)
    a(f'''
    v_lshrrev_b32 v2, 6, v0
    v_and_b32 v{vL}, 63, v0
    s_and_b32 s{sG}, s2, 7
    v_readfirstlane_b32 s{sW}, v2
    s_lshr_b32 s{sIDX}, s2, 3
    s_and_b32 s{sBLK}, s{sIDX}, 1
    s_lshr_b32 s{sBP}, s{sIDX}, 1
    v_lshlrev_b32 v{vLin}, 4, v{vL}
    s_and_b32 s{sSUB}, s{sBP}, 3
    s_lshl_b32 s{sSUB}, s{sSUB}, 1
    s_lshr_b32 s{sQ8}, s{sBP}, 2
    s_lshl_b32 s{sQ8}, s{sQ8}, 3
    s_mov_b32 s{SRD_WQ+2}, 0x400000
    s_mov_b32 s{SRD_WQ+3}, 0x00020000
    s_mov_b32 s{SRD_X+2}, 0x100000
    s_mov_b32 s{SRD_X+3}, 0x00020000
    s_mov_b32 s{SRD_K+2}, 0x2000000
    s_mov_b32 s{SRD_K+3}, 0x00020000
    s_mov_b32 s{SRD_V+2}, 0x2000000
    s_mov_b32 s{SRD_V+3}, 0x00020000
    s_cmp_lt_u32 s{sW}, 4
    s_cbranch_scc1 L_setup
    s_cmp_ge_u32 s{sW}, 6
    s_cbranch_scc1 L_iaux
    ''')
    def kslot_ops(n, dst, shift, base):
        return [f's_add_u32 s{sT1}, s{sSUB}, {n}', f's_and_b32 s{sT1}, s{sT1}, 7',
                f's_add_u32 s{sT2}, s{sQ8}, {n}', f's_and_b32 s{sT2}, s{sT2}, 24',
                f's_or_b32 s{sT1}, s{sT1}, s{sT2}', f's_lshl_b32 s{sT1}, s{sT1}, {shift}',
                f's_add_u32 s{dst}, s{sT1}, s{base}']
    a(f'v_mov_b32 v{vDW}, v{vLin}')
    for j in range(1, 4):
        a(f'v_xor_b32 v{vDW+j}, {j*32}, v{vLin}')
        a(f'v_add_u32 v{vDW+j}, {j*7168}, v{vDW+j}')
    a(f'''
    s_and_b32 s{sT1}, s{sW}, 1
    s_mul_i32 s{sLM}, s{sT1}, {KB}
    s_lshl_b32 s{sT1}, s{sT1}, 16
    s_lshl_b32 s{sWB}, s{sG}, 10
    s_add_u32 s{sWB}, s{sWB}, s{sT1}
    s_mov_b32 s{sC}, 0
    s_add_u32 s{sPOS}, s{sLM}, {2*T8}
    ''')
    for t in kslot_ops(0, sT3, 17, sWB): a(t)
    a(f'''
    s_mov_b32 m0, s{sPOS}
    s_cmp_eq_u32 s{sBLK}, 0
    s_waitcnt lgkmcnt(0)
    s_cselect_b32 s{SRD_WQ}, s22, s32
    s_cselect_b32 s{SRD_WQ+1}, s23, s33
    ''')
    def w_issue(SRD, fl, half):
        for j in range(4):
            a(f'buffer_load_dwordx4 v{vDW+j}, {srd(SRD)}, s{sT3} offen offset:{j*1024}{fl} lds')
        a(f's_add_u32 m0, s{sPOS}, 4096')
        a(f's_add_u32 s{sT3}, s{sT3}, {half}')
        for j in range(4):
            a(f'buffer_load_dwordx4 v{vDW+j}, {srd(SRD)}, s{sT3} offen offset:{j*1024}{fl} lds')
    a.label('L_iw')
    w_issue(SRD_WQ, wq_fl, 32768)
    a(f's_add_u32 s{sC}, s{sC}, 1')
    a(f's_add_u32 s{sPOS}, s{sPOS}, {T8}')
    for t in kslot_ops(f's{sC}', sT3, 17, sWB): a(t)
    a(f'''
    s_mov_b32 m0, s{sPOS}
    s_cmp_lt_u32 s{sC}, 4
    s_cbranch_scc1 L_iw
    s_branch L_setup
    ''')
    a.label('L_iaux')
    a(f'''
    v_lshrrev_b32 v40, 4, v{vL}
    v_and_b32 v41, 15, v{vL}
    v_xor_b32 v42, v41, v40
    v_lshlrev_b32 v42, 4, v42
    v_lshl_add_u32 v{vDW}, v40, 10, v42
    v_lshl_add_u32 v{vKD4}, v40, 8, v42
    v_lshlrev_b32 v43, 2, v40
    v_xor_b32 v43, v41, v43
    v_lshlrev_b32 v43, 4, v43
    v_lshl_add_u32 v{vDV}, v40, 8, v43
    ''')
    for j in range(1, 4):
        a(f'v_xor_b32 v{vDW+j}, {j*64}, v{vDW}')
        a(f'v_add_u32 v{vDW+j}, {j*3072}, v{vDW+j}')
        a(f'v_xor_b32 v{vKD4+j}, {j*64}, v{vKD4}')
    a(f'''
    s_and_b32 s{sT1}, s{sW}, 1
    s_mul_i32 s{sAMK}, s{sT1}, {KB}
    s_lshl_b32 s{sAMV}, s{sT1}, 15
    s_add_u32 s{sAMV}, s{sAMV}, {VA}
    s_lshl_b32 s{sT2}, s{sBP}, 1
    s_add_u32 s{sT2}, s{sT2}, s{sT1}
    s_lshl_b32 s{sAX}, s{sT2}, 15
    s_lshl_b32 s{sAKV}, s{sT2}, 3
    s_add_u32 s{sAKV}, s{sAKV}, s{sG}
    s_lshl_b32 s{sAKV}, s{sAKV}, 17
    s_cmp_eq_u32 s{sBLK}, 0
    s_waitcnt lgkmcnt(0)
    s_cselect_b32 s{SRD_X}, s16, s26
    s_cselect_b32 s{SRD_X+1}, s17, s27
    s_cselect_b32 s{SRD_K}, s18, s28
    s_cselect_b32 s{SRD_K+1}, s19, s29
    s_cselect_b32 s{SRD_V}, s20, s30
    s_cselect_b32 s{SRD_V+1}, s21, s31
    ''')
    def aux_tile(kind, t):
        if kind == 'K':
            mb, pos, S, vo = sAMK, t % 6, SRD_K, lambda j: vKD4 + j
        else:
            mb, pos, S, vo = sAMV, t % 4, SRD_V, lambda j: vDV
        for hf in range(2):
            a(f's_add_u32 m0, s{mb}, {pos*T8 + hf*4096}')
            a(f's_add_u32 s{sT3}, s{sAKV}, {t*T8 + hf*4096}')
            for j in range(4):
                a(f'buffer_load_dwordx4 v{vo(j)}, {srd(S)}, s{sT3} offen offset:{j*1024}{kv_fl} lds')
    def x_tile(nb, regs=None):
        a(f's_add_u32 s{sT1}, s{sQ8}, {nb*8}')
        a(f's_and_b32 s{sT1}, s{sT1}, 24')
        a(f's_lshl_b32 s{sT1}, s{sT1}, 5')
        a(f's_add_u32 s{sT3}, s{sT1}, s{sAX}')
        for hf in range(2):
            if regs is None: a(f's_add_u32 m0, s{sAMV}, {(2+nb)*T8 + hf*4096}')
            if hf: a(f's_add_u32 s{sT3}, s{sT3}, 16384')
            for j in range(4):
                if regs is None:
                    a(f'buffer_load_dwordx4 v{vDW+j}, {srd(SRD_X)}, s{sT3} offen offset:{j*1024} lds')
                else:
                    r = regs + 16 * hf + 4 * j
                    a(f'buffer_load_dwordx4 v[{r}:{r+3}], v{vDW+j}, {srd(SRD_X)}, s{sT3} offen offset:{j*1024}')
    if park:
        a('s_cbranch_scc1 L_nopark')
        aux_tile('K', 0); aux_tile('K', 1); aux_tile('V', 0)
        a.label('L_nopark')
    x_tile(0); x_tile(1); x_tile(2, 64); x_tile(3, 96)

    a.label('L_setup')
    a(f'''
    s_mov_b32 s{SRD_WO+2}, 0x400000
    s_mov_b32 s{SRD_WO+3}, 0x00020000
    s_mov_b32 s{SRD_WS+2}, 0x10000000
    s_mov_b32 s{SRD_WS+3}, 0x00020000
    s_mov_b32 s{sSC}, {fbits(128 ** -0.5 * 1.4426950408889634)}
    s_mov_b32 s{sSC+1}, s{sSC}
    s_mov_b32 s{sTHR}, {fbits(1024.0)}
    s_and_b32 s42, s{sW}, 3
    s_lshr_b32 s43, s{sW}, 2
    ''')
    sH, sB = 42, 43
    a(f'''
    v_lshrrev_b32 v40, 4, v{vL}
    v_and_b32 v41, 15, v{vL}
    v_lshrrev_b32 v42, 5, v{vL}
    v_and_b32 v43, 31, v{vL}
    v_bfe_u32 v44, v{vL}, 2, 2
    v_and_b32 v45, 1, v40
    v_lshlrev_b32 v45, 4, v45
    v_bfe_u32 v46, v{vL}, 1, 1
    v_lshl_add_u32 v45, v46, 3, v45
    v_and_b32 v46, 1, v{vL}
    ''')
    a(f'''
    v_lshl_add_u32 v47, v46, 7, v45
    v_lshl_add_u32 v47, v44, 5, v47
    v_lshl_add_u32 v47, v44, 10, v47
    s_lshl_b32 s{sT1}, s{sH}, 8
    v_add_u32 v47, s{sT1}, v47
    s_mov_b32 s{sT1}, {KB}
    v_mad_u32_u24 v{vAb}, v42, s{sT1}, v47
    v_xor_b32 v{vAb+1}, 32, v{vAb}
    v_xor_b32 v{vAb+2}, 64, v{vAb}
    v_xor_b32 v{vAb+3}, 0x60, v{vAb}
    ''')
    a(f'''
    v_xor_b32 v47, v42, v41
    v_lshlrev_b32 v47, 4, v47
    v_lshl_add_u32 v47, v43, 8, v47
    v_add_u32 v{vBb}, {VA + 2*T8}, v47
    ''')
    a(f'''
    v_lshlrev_b32 v47, 3, v42
    v_xor_b32 v47, v47, v41
    v_lshlrev_b32 v47, 4, v47
    v_lshl_add_u32 v47, v43, 8, v47
    s_mul_i32 s{sMK}, s{sB}, {KB}
    v_add_u32 v{vKC}, s{sMK}, v47
    ''')
    for s in range(1, 8):
        a(f'v_xor_b32 v{vKC+s}, {s*16}, v{vKC}')
    a(f'''
    v_lshl_add_u32 v47, v46, 5, v45
    v_lshl_add_u32 v47, v44, 6, v47
    v_lshl_add_u32 v47, v44, 8, v47
    v_lshl_add_u32 v47, v42, 10, v47
    s_lshl_b32 s{sMV}, s{sB}, 15
    s_add_u32 s{sMV}, s{sMV}, {VA}
    v_add_u32 v{vVC}, s{sMV}, v47
    v_xor_b32 v{vVC+1}, 64, v{vVC}
    v_xor_b32 v{vVC+2}, 0x80, v{vVC}
    v_xor_b32 v{vVC+3}, 0xc0, v{vVC}
    ''')
    a(f'''
    v_xor_b32 v47, v41, v40
    v_lshlrev_b32 v47, 4, v47
    v_lshl_add_u32 v47, v40, 8, v47
    s_and_b32 s{sT1}, s{sH}, 1
    s_lshl_b32 s{sT2}, s{sT1}, 7
    v_xor_b32 v{vDK}, s{sT2}, v47
    v_xor_b32 v{vDK+1}, 64, v{vDK}
    v_lshlrev_b32 v47, 2, v40
    v_xor_b32 v47, v41, v47
    v_lshlrev_b32 v47, 4, v47
    v_lshl_add_u32 v{vDV}, v40, 8, v47
    s_lshl_b32 s{sT2}, s{sT1}, 6
    v_xor_b32 v{vDO}, s{sT2}, v{vLin}
    v_xor_b32 v{vDO+1}, 32, v{vDO}
    ''')
    a(f'''
    s_lshl_b32 s{sT1}, s{sH}, 11
    s_add_u32 s{sMK}, s{sMK}, s{sT1}
    s_add_u32 s{sMV}, s{sMV}, s{sT1}
    s_lshl_b32 s{sKV}, s{sBP}, 1
    s_add_u32 s{sKV}, s{sKV}, s{sB}
    s_lshl_b32 s{sKV}, s{sKV}, 3
    s_add_u32 s{sKV}, s{sKV}, s{sG}
    s_lshl_b32 s{sKV}, s{sKV}, 17
    s_add_u32 s{sKV}, s{sKV}, s{sT1}
    s_lshl_b32 s{sWO}, s{sG}, 19
    s_lshl_b32 s{sT1}, s{sW}, 11
    s_add_u32 s{sWO}, s{sWO}, s{sT1}
    s_and_b32 s{sT1}, s{sH}, 1
    s_mul_i32 s{sT2}, s{sT1}, {KB}
    s_add_u32 s{sT2}, s{sT2}, {KA + 5*T8}
    s_lshl_b32 s{sT1}, s{sT1}, 15
    s_add_u32 s{sT1}, s{sT1}, {VA + 3*T8}
    s_cmp_lt_u32 s{sH}, 2
    s_cselect_b32 s{sT1}, s{sT2}, s{sT1}
    v_add_u32 v{vQX}, s{sT1}, v{vLin}
    s_cmp_eq_u32 s{sBLK}, 0
    s_waitcnt lgkmcnt(0)
    s_cselect_b32 s{SRD_K}, s18, s28
    s_cselect_b32 s{SRD_K+1}, s19, s29
    s_cselect_b32 s{SRD_V}, s20, s30
    s_cselect_b32 s{SRD_V+1}, s21, s31
    s_cselect_b32 s{SRD_WO}, s24, s34
    s_cselect_b32 s{SRD_WO+1}, s25, s35
    s_mov_b32 s{SRD_WS}, s40
    s_mov_b32 s{SRD_WS+1}, s41
    s_cmp_lt_u32 s{sW}, 4
    s_cbranch_scc1 L_cons
    s_cmp_ge_u32 s{sW}, 6
    s_cbranch_scc1 L_aux
    ''')
    a(f'''
    s_add_u32 s{sPOS}, s{sLM}, {2*T8}
    s_waitcnt vmcnt(24)
    s_barrier
    ''')
    stamp(1)
    a.label('L_wq')
    a(f'''
    s_mov_b32 m0, s{sPOS}
    s_waitcnt vmcnt(16)
    s_barrier
    ''')
    if not nodma: w_issue(SRD_WQ, wq_fl, 32768)
    a(f's_add_u32 s{sC}, s{sC}, 1')
    a(f's_and_b32 s{sPOS}, s{sC}, 3')
    a(f's_lshl_b32 s{sPOS}, s{sPOS}, 13')
    a(f's_add_u32 s{sPOS}, s{sPOS}, s{sLM}')
    a(f's_add_u32 s{sPOS}, s{sPOS}, {2*T8}')
    for t in kslot_ops(f's{sC}', sT3, 17, sWB): a(t)
    a(f'''
    s_cmp_lt_u32 s{sC}, 32
    s_cbranch_scc1 L_wq
    s_waitcnt vmcnt(16)
    s_barrier
    ''')
    for j in range(1, 4):
        a(f'v_subrev_u32 v{vDW+j}, {j*7168}, v{vDW+j}')
    a(f'''
    s_and_b32 s{sT1}, s{sW}, 1
    s_lshl_b32 s{sT1}, s{sT1}, 13
    s_lshl_b32 s{sWB}, s{sG}, 19
    s_add_u32 s{sWB}, s{sWB}, s{sT1}
    s_waitcnt vmcnt(8)
    s_barrier
    s_waitcnt vmcnt(0)
    s_barrier
    s_barrier
    s_branch L_getq
    ''')
    a.label('L_aux')
    a(f'v_add_u32 v40, s{sAMV}, v{vLin}')
    a('s_waitcnt vmcnt(24)')
    a('s_barrier')
    stamp(1)
    if stamps: a('s_waitcnt lgkmcnt(0)')
    for i in range(32):
        if i == 7: a('s_waitcnt vmcnt(16)')
        if i in (15, 23): a('s_waitcnt lgkmcnt(0)')
        a('s_barrier')
        if qst and i in (1, 3, 7, 15, 23, 31):
            stamp(2 + (1, 3, 7, 15, 23, 31).index(i), True)
            if i != 7 and i != 15: a('s_waitcnt lgkmcnt(0)')
        if i in (7, 15):
            k = i // 8
            a(f's_waitcnt vmcnt({8 - 8*k})')
            for j in range(8):
                r = 64 + 32 * k + 4 * j
                a(f'ds_write_b128 v40, v[{r}:{r+3}] offset:{(2+k)*T8 + j*1024}')
        if i >= 28:
            kind, t = [('K', 0), ('K', 1), ('K', 2), ('V', 0)][i - 28]
            skip = park and t != 2
            if skip:
                a(f's_cmp_lg_u32 s{sBLK}, 0')
                a(f's_cbranch_scc1 L_sk{i}')
            aux_tile(kind, t)
            if skip: a.label(f'L_sk{i}')
    a.label('L_getq')
    stamp(2)
    a('s_waitcnt vmcnt(24) lgkmcnt(0)')
    a('s_barrier')
    for s in range(8):
        a(f'ds_read_b128 v[{vQ+4*s}:{vQ+4*s+3}], v{vQX} offset:{s*1024}')
    a('s_branch L_attn')

    q = Q(a)
    a.label('L_cons')
    a(f'''
    s_lshl_b32 s{sSUB}, s{sSUB}, 5
    s_mov_b32 s{sMASK}, 0x2000
    s_mov_b32 s{sBEG}, {2*T8}
    s_mov_b32 s{sPOS}, {2*T8}
    s_mov_b32 s{sPH}, 0
    ''')
    def rdA(F, t):
        if noread: return
        for e in range(2):
            q.issue(('A', t), f'ds_read_b64_tr_b16 v[{F+4*t+2*e}:{F+4*t+2*e+1}], v{vA+t} offset:{e*4096}')
    def rdB(F, u):
        if noread: return
        q.issue(('B', u), f'ds_read_b128 v[{F+16+4*u}:{F+16+4*u+3}], v{vB} offset:{u*32768}')
    def pm(F, t, u, zero=False):
        if nomfma: return
        d = acc(t, u)
        c = '0' if zero else f'v[{d}:{d+15}]'
        a(f'v_mfma_f32_32x32x16_bf16 v[{d}:{d+15}], v[{F+4*t}:{F+4*t+3}], v[{F+16+4*u}:{F+16+4*u+3}], {c}')
    a.label('L_phase')
    a(f'''
    s_mov_b32 s{sC}, 0
    v_xor_b32 v{vB}, s{sSUB}, v{vBb}
    ''')
    for t in range(4): a(f'v_add_u32 v{vA+t}, s{sPOS}, v{vAb+t}')
    a('s_waitcnt vmcnt(0) lgkmcnt(0)')
    a('s_barrier')
    if stamps:
        a(f's_cmp_lg_u32 s{sPH}, 0')
        a('s_cbranch_scc1 L_st5')
        stamp(1)
        a('s_branch L_st1')
        a.label('L_st5')
        stamp(5)
        a.label('L_st1')
        a('s_waitcnt lgkmcnt(0)')
    rdB(F0, 1); rdA(F0, 0); rdB(F0, 0); rdA(F0, 1); rdA(F0, 2); rdA(F0, 3)
    def first_half(F, zero):
        q.wait(('A', 0)); pm(F, 0, 1, zero)
        a(f'''
        s_add_u32 s{sC}, s{sC}, 32
        s_add_u32 s{sT1}, s{sC}, s{sSUB}
        s_and_b32 s{sT1}, s{sT1}, 0xe0
        s_lshl_b32 s{sT2}, s{sC}, 5
        s_and_b32 s{sT2}, s{sT2}, s{sMASK}
        s_or_b32 s{sT1}, s{sT1}, s{sT2}
        ''')
        q.wait(('B', 0)); pm(F, 0, 0, zero)
        a(f'''
        s_add_u32 s{sPOS}, s{sPOS}, {T8}
        s_cmp_eq_u32 s{sPOS}, {6*T8}
        s_cselect_b32 s{sPOS}, s{sBEG}, s{sPOS}
        v_xor_b32 v{vB}, s{sT1}, v{vBb}
        ''')
        q.wait(('A', 1)); pm(F, 1, 1, zero)
        for t in range(4): a(f'v_add_u32 v{vA+t}, s{sPOS}, v{vAb+t}')
        a(f's_cmp_eq_u32 s{sC}, 1024')
        pm(F, 1, 0, zero)
        a('s_waitcnt lgkmcnt(0)')
        q.clear()
        a('s_barrier')
    def second_half(F, Fn, zero):
        pm(F, 2, 1, zero)
        rdB(Fn, 1); rdA(Fn, 0); rdB(Fn, 0)
        pm(F, 3, 1, zero)
        rdA(Fn, 1); rdA(Fn, 2)
        pm(F, 2, 0, zero)
        rdA(Fn, 3)
        pm(F, 3, 0, zero)
    first_half(F0, True); second_half(F0, F1, True)
    a.label('L_cloop')
    saved = list(q.q)
    first_half(F1, False)
    a('s_cbranch_scc1 L_ctail')
    second_half(F1, F0, False)
    first_half(F0, False); second_half(F0, F1, False)
    assert q.q == saved
    a('s_branch L_cloop')
    q.clear()
    a.label('L_ctail')
    pm(F1, 2, 1)
    a(f's_cmp_lg_u32 s{sPH}, 0')
    a('s_cbranch_scc1 L_otail')
    def scale_pack(d, st):
        for i in range(0, 16, 2):
            if pk:
                a(f'v_pk_mul_f32 v[{d+i}:{d+i+1}], v[{d+i}:{d+i+1}], s[{sSC}:{sSC+1}]')
            else:
                a(f'v_mul_f32 v{d+i}, s{sSC}, v{d+i}')
                a(f'v_mul_f32 v{d+i+1}, s{sSC}, v{d+i+1}')
        for i in range(8):
            a(f'v_cvt_pk_bf16_f32 v{st+i}, v{d+2*i}, v{d+2*i+1}')
    QST = [64, 72, 80, 112]
    def qx(t):
        scale_pack(acc(t, 1), QST[t])
        for c2 in range(2):
            r = QST[t] + 4 * c2
            a(f'ds_write_b128 v{vQX}, v[{r}:{r+3}] offset:{(2*t+c2)*1024}')
    pm(F1, 3, 1)
    qx(0)
    pm(F1, 2, 0)
    qx(1)
    pm(F1, 3, 0)
    qx(2); qx(3)
    stamp(2)
    a('s_waitcnt lgkmcnt(0)')
    a('s_barrier')
    for t in range(4):
        scale_pack(acc(t, 0), vQ + 8 * t)
    a(f'''
    s_mov_b32 s{sMASK}, 0x6000
    s_mov_b32 s{sBEG}, 0
    s_mov_b32 s{sPOS}, {4*T8}
    s_mov_b32 s{sPH}, 1
    v_xor_b32 v{vBb}, {2*T8}, v{vBb}
    s_lshr_b32 s{sSUB}, s{sSUB}, 5
    ''')

    a.label('L_attn')
    if prio is not None:
        a(f's_cmp_lt_u32 s{sW}, 4')
        a('s_cbranch_scc1 L_noprio')
        a(f's_setprio {prio}')
        a.label('L_noprio')
    jobs = []
    for r in range(-1, 17):
        if r + 1 <= 15:
            for s in range(8): jobs.append((r, 'K', r + 1, s))
        if 1 <= r:
            order = [(c, dt) for c in range(2) for dt in range(4)] if r < 16 else [(c, dt) for dt in range(4) for c in range(2)]
            for c, dt in order: jobs.append((r, 'V', r - 1, (c, dt)))
    vm = [('K', 0)] * 8 + [('K', 1)] * 8 + [('K', 2)] * 8 + [('V', 0)] * 8
    state = dict(rd=0, pub=-1)
    def rd(j):
        r, kind, t, ix = jobs[j]
        F = vF + (j & 7) * 4
        if kind == 'K':
            q.issue(j, f'ds_read_b128 v[{F}:{F+3}], v{vKC+ix} offset:{(t % 6)*T8}')
        else:
            c, dt = ix
            for e in range(2):
                q.issue(j, f'ds_read_b64_tr_b16 v[{F+2*e}:{F+2*e+1}], v{vVC+dt} offset:{(t % 4)*T8 + (16*c+8*e)*256}')
    def reads_upto(j, la=LA):
        while state['rd'] < len(jobs) and state['rd'] <= j + la and jobs[state['rd']][0] <= state['pub']:
            n = 2 if jobs[state['rd']][1] == 'V' else 1
            if len(q.q) + n > 15: break
            rd(state['rd']); state['rd'] += 1
    def mm(j):
        r, kind, t, ix = jobs[j]
        F = vF + (j & 7) * 4
        q.wait(j)
        if kind == 'K':
            d = vS + (t & 1) * 16
            if ix == 0: c = '0' if t == 0 else f'v[{vNM}:{vNM+15}]'
            else: c = f'v[{d}:{d+15}]'
            a(f'v_mfma_f32_32x32x16_bf16 v[{d}:{d+15}], v[{F}:{F+3}], v[{vQ+4*ix}:{vQ+4*ix+3}], {c}')
        else:
            c, dt = ix
            d = vO + dt * 16
            p = vP + (t & 1) * 8 + c * 4
            cc = '0' if (t == 0 and c == 0) else f'v[{d}:{d+15}]'
            a(f'v_mfma_f32_32x32x16_bf16 v[{d}:{d+15}], v[{F}:{F+3}], v[{p}:{p+3}], {cc}')
    def fin(par, i, p0):
        r = []
        if i == 2:
            if pk: r.append(f'v_pk_add_f32 v[{vTS}:{vTS+1}], v[{vE}:{vE+1}], v[{p0}:{p0+1}]')
            else: r += [f'v_add_f32 v{vTS}, v{vE}, v{p0}', f'v_add_f32 v{vTS+1}, v{vE+1}, v{p0+1}']
        elif i > 2:
            if pk: r.append(f'v_pk_add_f32 v[{vTS}:{vTS+1}], v[{vTS}:{vTS+1}], v[{p0}:{p0+1}]')
            else: r += [f'v_add_f32 v{vTS}, v{vTS}, v{p0}', f'v_add_f32 v{vTS+1}, v{vTS+1}, v{p0+1}']
        r.append(f'v_cvt_pk_bf16_f32 v{vP+par*8+i//2}, v{p0}, v{p0+1}')
        return r
    def softmax_ops(par, addm=False):
        S = vS + par * 16
        ops = []
        for i in range(0, 16, 2):
            e0 = vE + (i & 7)
            if addm:
                ops.append(f'v_add_f32 v{S+i}, v{S+i}, v{vNM}')
                ops.append(f'v_add_f32 v{S+i+1}, v{S+i+1}, v{vNM}')
            ops.append(f'v_exp_f32 v{e0}, v{S+i}')
            ops.append(f'v_exp_f32 v{e0+1}, v{S+i+1}')
            if i >= 2:
                ops += fin(par, i - 2, vE + ((i - 2) & 7))
        ops += fin(par, 14, vE + 6)
        ops.append(f'v_add_f32 v{vTS}, v{vTS}, v{vTS+1}')
        return ops
    def max_ops(S):
        r = [f'v_max3_f32 v{vT}, v{S}, v{S+1}, v{S+2}', f'v_max3_f32 v{vT+1}, v{S+3}, v{S+4}, v{S+5}']
        for i in (6, 10):
            r.append(f'v_max3_f32 v{vT}, v{vT}, v{S+i}, v{S+i+1}')
            r.append(f'v_max3_f32 v{vT+1}, v{vT+1}, v{S+i+2}, v{S+i+3}')
        r.append(f'v_max3_f32 v{vT}, v{vT}, v{S+14}, v{S+15}')
        r.append(f'v_max_f32 v{vT}, v{vT}, v{vT+1}')
        r.append(f'v_mov_b32 v{vT+1}, v{vT}')
        r.append(f'v_permlane32_swap_b32 v{vT}, v{vT+1}')
        return r
    def issue_groups(w):
        g = []
        if w + 2 <= 15:
            t = w + 2
            g.append(([f's_add_u32 m0, s{sMV}, {(t % 4)*T8}', f's_add_u32 s{sT3}, s{sKV}, {t*T8}'],
                      [f'buffer_load_dwordx4 v{vDV}, {srd(SRD_V)}, s{sT3} offen offset:{j*1024}{kv_fl} lds' for j in range(2)], ('V', t)))
        if w + 4 <= 15:
            t = w + 4
            g.append(([f's_add_u32 m0, s{sMK}, {(t % 6)*T8}', f's_add_u32 s{sT3}, s{sKV}, {t*T8}'],
                      [f'buffer_load_dwordx4 v{vDK+j}, {srd(SRD_K)}, s{sT3} offen offset:{j*1024}{kv_fl} lds' for j in range(2)], ('K', t)))
        if 13 <= w <= 15:
            for n in (2 * (w - 13), 2 * (w - 13) + 1):
                g.append((kslot_ops(n, sT3, 14, sWO) + [f's_add_u32 m0, s{sMK}, {((4 + n) % 6)*T8}'],
                          [f'buffer_load_dwordx4 v{vDO+j}, {srd(SRD_WO)}, s{sT3} offen offset:{j*1024}{wo_fl} lds' for j in range(2)], ('W', n)))
        flat = []
        for pre, lds, tag in g:
            flat.append((pre + [lds[0]], tag)); flat.append(([lds[1]], tag))
        return flat
    def barrier(r):
        need = [('K', r + 1), ('V', r - 1)]
        idx = [i for i, t in enumerate(vm) if t in need]
        n = len(vm) - 1 - max(idx)
        a(f's_waitcnt vmcnt({n}) lgkmcnt(0)')
        q.clear()
        a('s_barrier')
        state['pub'] = r

    state['pub'] = -1
    reads_upto(-1, 8)
    pend = issue_groups(-1)
    j = 0
    for r in range(-1, 17):
        rj = [k for k in range(len(jobs)) if jobs[k][0] == r]
        n = len(rj)
        if r == -1: chunks = [[] for _ in rj]
        elif r == 0: chunks = spread(softmax_ops(0, True), n)
        elif r == 1: chunks = [[]] + spread(softmax_ops(1), n - 1)
        elif r <= 15: chunks = spread(softmax_ops(r & 1), n)
        else: chunks = [[] for _ in rj]
        if r == 15:
            extra = [f'v_lshrrev_b32 v42, 5, v{vL}', f'v_and_b32 v43, 15, v{vL}', f'v_lshlrev_b32 v42, 1, v42',
                     f'v_xor_b32 v42, v42, v43', f'v_lshlrev_b32 v42, 4, v42', f'v_and_b32 v43, 31, v{vL}',
                     f'v_lshl_add_u32 v42, v43, 8, v42',
                     f's_lshr_b32 s{sT1}, s{sQ8}, 3', f's_sub_u32 s{sT1}, s{sH}, s{sT1}', f's_and_b32 s{sT1}, s{sT1}, 3',
                     f's_lshl_b32 s{sT1}, s{sT1}, 13', f's_lshl_b32 s{sT2}, s{sB}, 15', f's_add_u32 s{sT1}, s{sT1}, s{sT2}',
                     f's_add_u32 s{sRET+0}, s{sT1}, {VA}', f'v_add_u32 v{vOW}, s{sRET}, v42']
            extra += [f'v_xor_b32 v{vOW+k}, {(4*(k>>1)+(k&1))*16}, v{vOW}' for k in range(1, 8)]
            late15 = extra
        for i, k in enumerate(rj):
            mm(k)
            if r == 16:
                c, dt = jobs[k][3]
                reads_upto(k)
                if i == 3:
                    a('s_waitcnt lgkmcnt(0)')
                    q.clear()
                    a('s_barrier')
                if c == 1 and dt >= 1:
                    fin_dt(dt - 1)
                continue
            reads_upto(k)
            if pend:
                ins, tag = pend.pop(0)
                for t in ins: a(t)
                vm.append(tag)
            for t in chunks[i]: a(t)
            if i == n - 5:
                while pend:
                    ins, tag = pend.pop(0)
                    for t in ins: a(t)
                    vm.append(tag)
                assert state['rd'] > rj[-1]
                if r == -1: stamp(3)
                if r == 15: stamp(4)
                barrier(r + 1)
                reads_upto(k)
                pend = issue_groups(r + 1)
        if r == -1:
            for t in max_ops(vS): a(t)
            a(f'v_max_f32 v{vT}, v{vT}, v{vT+1}')
            a(f'v_sub_f32 v{vNM}, 0, v{vT}')
            for i in range(1, 16): a(f'v_mov_b32 v{vNM+i}, v{vNM}')
        elif r == 0:
            a(f'v_mov_b32 v{vSUM}, v{vTS}')
        elif r <= 15:
            a(f's_mov_b32 s{sRET}, {r}')
            a(f'v_cmp_nge_f32 vcc, s{sTHR}, v{vTS}')
            a(f's_cbranch_vccnz L_slow{r & 1}')
            a.label(f'L_back{r}')
            a(f'v_add_f32 v{vSUM}, v{vSUM}, v{vTS}')
        if r == 15:
            a(f'v_mov_b32 v{vT}, v{vSUM}')
            for t in late15[:2]: a(t)
            a(f'v_permlane32_swap_b32 v{vT}, v{vSUM}')
            for t in late15[2:4]: a(t)
            a(f'v_add_f32 v{vSUM}, v{vSUM}, v{vT}')
            a(f'v_rcp_f32 v{vTS}, v{vSUM}')
            rest15 = late15[4:] + [f'v_mov_b32 v{vTS+1}, v{vTS}']
            def fin_dt(dt):
                if dt == 0:
                    for t in rest15: a(t)
                d = vO + dt * 16
                st = vS + dt * 8
                for i in range(0, 16, 2):
                    if pk: a(f'v_pk_mul_f32 v[{d+i}:{d+i+1}], v[{d+i}:{d+i+1}], v[{vTS}:{vTS+1}]')
                    else:
                        a(f'v_mul_f32 v{d+i}, v{vTS}, v{d+i}')
                        a(f'v_mul_f32 v{d+i+1}, v{vTS}, v{d+i+1}')
                for i in range(8):
                    a(f'v_cvt_pk_bf16_f32 v{st+i}, v{d+2*i}, v{d+2*i+1}')
                for c2 in range(2):
                    a(f'ds_write_b128 v{vOW+2*dt+c2}, v[{st+4*c2}:{st+4*c2+3}]')
    fin_dt(3)
    if prio is not None: a('s_setprio 0')
    a(f'''
    s_lshl_b32 s{sT1}, s{sSUB}, 5
    s_cmp_lt_u32 s{sW}, 4
    s_cselect_b32 s{sSUB}, s{sT1}, s{sSUB}
    s_cbranch_scc1 L_phase
    ''')
    a(f's_mov_b32 s{sC}, 6')
    a(f's_add_u32 s{sPOS}, s{sLM}, {4*T8}')
    a(f's_add_u32 s{sBEG}, s{sLM}, {6*T8}')
    a('s_waitcnt vmcnt(0) lgkmcnt(0)')
    a('s_barrier')
    stamp(5); stamp(6)
    a(f's_cmp_ge_u32 s{sW}, 6')
    a('s_cbranch_scc1 L_fin')
    a.label('L_wo')
    for t in kslot_ops(f's{sC}', sT3, 14, sWB): a(t)
    a(f'''
    s_mov_b32 m0, s{sPOS}
    s_waitcnt vmcnt(32)
    s_barrier
    ''')
    if not nodma: w_issue(SRD_WO, wo_fl, 4096)
    a(f'''
    s_add_u32 s{sPOS}, s{sPOS}, {T8}
    s_cmp_eq_u32 s{sPOS}, s{sBEG}
    s_cselect_b32 s{sPOS}, s{sLM}, s{sPOS}
    s_add_u32 s{sC}, s{sC}, 1
    s_cmp_lt_u32 s{sC}, 32
    s_cbranch_scc1 L_wo
    ''')
    for n in (32, 24, 16, 8, 0):
        a(f's_waitcnt vmcnt({n})')
        a('s_barrier')
    a('s_branch L_fin')

    a.label('L_otail')
    stamp(6)
    a(f'''
    s_lshl_b32 s{sT1}, s2, 16
    s_lshl_b32 s{sT2}, s{sW}, 14
    s_add_u32 s16, s{sT1}, s{sT2}
    s_add_u32 s17, s16, 4096
    s_add_u32 s18, s16, 8192
    s_add_u32 s19, s16, 12288
    ''')
    def st(t, u):
        d = acc(t, u)
        for i in range(8):
            a(f'v_cvt_pk_bf16_f32 v{d+i}, v{d+2*i}, v{d+2*i+1}')
        for c2 in range(2):
            a(f'buffer_store_dwordx4 v[{d+4*c2}:{d+4*c2+3}], v{vLin}, {srd(SRD_WS)}, s{16+2*u+(t>>1)} offen offset:{(t&1)*2048+c2*1024}{st_fl}')
    pm(F1, 3, 1)
    st(0, 1)
    pm(F1, 2, 0)
    st(0, 0)
    pm(F1, 3, 0)
    st(1, 1); st(1, 0); st(2, 1); st(3, 1); st(2, 0); st(3, 0)
    a.label('L_fin')
    if stamps:
        a('s_waitcnt vmcnt(0)')
        stamp(7)
        a('s_waitcnt lgkmcnt(0)')
        for k in range(8):
            a(f'v_mov_b32 v{48+k}, s{STAMP0+2*k}')
        a(f'''
        s_lshl_b32 s{sT1}, s2, 3
        s_add_u32 s{sT1}, s{sT1}, s{sW}
        s_lshl_b32 s{sT1}, s{sT1}, 5
        s_add_u32 s{sT1}, s{sT1}, 0x8000000
        v_mov_b32 v41, 0
        v_cmp_eq_u32 vcc, 0, v{vL}
        s_and_saveexec_b64 s[42:43], vcc
        buffer_store_dwordx4 v[48:51], v41, {srd(SRD_WS)}, s{sT1} offen
        buffer_store_dwordx4 v[52:55], v41, {srd(SRD_WS)}, s{sT1} offen offset:16
        ''')
    a.label('L_exit')
    a('s_endpgm')

    for par in range(2):
        S = vS + par * 16
        a.label(f'L_slow{par}')
        a('s_nop 7')
        a('s_nop 7')
        for t in max_ops(S): a(t)
        a(f'v_max3_f32 v{vT}, v{vT}, v{vT+1}, 0')
        a(f'v_exp_f32 v{vT+1}, -v{vT}')
        for i in range(32):
            a(f'v_sub_f32 v{vS+i}, v{vS+i}, v{vT}')
        for i in range(16):
            a(f'v_sub_f32 v{vNM+i}, v{vNM+i}, v{vT}')
        for i in range(64):
            a(f'v_mul_f32 v{vO+i}, v{vT+1}, v{vO+i}')
        a(f'v_mul_f32 v{vSUM}, v{vT+1}, v{vSUM}')
        for t in softmax_ops(par): a(t)
        rs = [r for r in range(1, 16) if (r & 1) == par]
        for r in rs[:-1]:
            a(f's_cmp_eq_u32 s{sRET}, {r}')
            a(f's_cbranch_scc1 L_back{r}')
        a(f's_branch L_back{rs[-1]}')

    kernel_begin(a, RED)
    a(f'''
    s_cmp_ge_u32 s2, 512
    s_cbranch_scc1 L_rexit
    s_load_dwordx2 s[4:5], s[0:1], 80
    s_load_dwordx2 s[8:9], s[0:1], 96
    v_and_b32 v1, 7, v0
    v_bfe_u32 v2, v0, 3, 3
    v_bfe_u32 v3, v0, 6, 1
    v_lshrrev_b32 v6, 7, v0
    v_lshl_add_u32 v2, v6, 3, v2
    v_lshlrev_b32 v4, 10, v1
    v_lshl_add_u32 v4, v3, 9, v4
    v_lshl_add_u32 v4, v2, 4, v4
    v_lshlrev_b32 v5, 11, v2
    v_lshl_add_u32 v5, v3, 7, v5
    v_lshl_add_u32 v5, v1, 4, v5
    s_lshr_b32 s12, s2, 4
    s_lshl_b32 s14, s12, 19
    s_bfe_u32 s13, s2, 0x30001
    s_lshl_b32 s15, s13, 13
    s_add_u32 s14, s14, s15
    s_and_b32 s17, s2, 1
    s_lshl_b32 s15, s17, 8
    s_add_u32 s14, s14, s15
    s_lshr_b32 s16, s12, 1
    s_lshl_b32 s16, s16, 17
    s_and_b32 s15, s2, 3
    s_lshl_b32 s15, s15, 15
    s_add_u32 s16, s16, s15
    s_and_b32 s15, s12, 1
    s_lshl_b32 s15, s15, 10
    s_add_u32 s16, s16, s15
    s_bfe_u32 s15, s2, 0x20002
    s_lshl_b32 s15, s15, 8
    s_add_u32 s16, s16, s15
    s_mov_b32 s6, 0x200000
    s_mov_b32 s7, 0x00020000
    s_mov_b32 s10, 0x10000000
    s_mov_b32 s11, 0x00020000
    s_mov_b32 s18, 0xffff0000
    s_waitcnt lgkmcnt(0)
    ''')
    for g in range(8):
        a(f'buffer_load_dwordx4 v[{8+4*g}:{11+4*g}], v4, s[8:11], s14 offen')
        if g < 7: a('s_add_u32 s14, s14, 65536')
    for g in range(8):
        a(f's_waitcnt vmcnt({7-g})')
        for i in range(4):
            r = 8 + 4 * g + i
            if g == 0:
                a(f'v_lshlrev_b32 v{40+2*i}, 16, v{r}')
                a(f'v_and_b32 v{41+2*i}, s18, v{r}')
            else:
                a(f'v_lshlrev_b32 v6, 16, v{r}')
                a(f'v_and_b32 v7, s18, v{r}')
                a(f'v_add_f32 v{40+2*i}, v{40+2*i}, v6')
                a(f'v_add_f32 v{41+2*i}, v{41+2*i}, v7')
    for i in range(4):
        a(f'v_cvt_pk_bf16_f32 v{48+i}, v{40+2*i}, v{41+2*i}')
    a('buffer_store_dwordx4 v[48:51], v5, s[4:7], s16 offen')
    a.label('L_rexit')
    a('s_endpgm')

    lines, n = hz.fix(a.lines, verbose='-v' in sys.argv)
    print('hazard nops inserted (states):', n)
    body = '\n'.join(lines) + '\n'
    return file_text([(NAME, 256, 512, 163840), (RED, 512, 256, 0)], body,
                     [descriptor(NAME, 256, 256), descriptor(RED, 56, 56, 24)])

if __name__ == '__main__':
    open('k2.s', 'w').write(gen(stamps=False))
    V = {'q': dict(qst=True), 'qnp': dict(qst=True, park=False), 'qnpnc': dict(qst=True, park=False, nomfma=True, noread=True), 'qnppl': dict(qst=True, park=False, wq_fl=''), 's': {}, 'np': dict(park=False), 'c': dict(cyc=True), 'c_nodma': dict(cyc=True, nodma=True), 'c_nomfma': dict(cyc=True, nomfma=True),
         'c_noread': dict(cyc=True, noread=True), 'c_nocomp': dict(cyc=True, noread=True, nomfma=True), 'c_mfmaonly': dict(cyc=True, noread=True, nodma=True)}
    for k, p in V.items():
        open(f'k2{k}.s', 'w').write(gen(stamps=True, **p))
```

```python
import sys, struct
from asmlib import *
import hz

BASE = 'concat_heads__gqa_block_cached__gqa_block_cached__near_ridge'
NAME = BASE + '_kernel'
RED = 'gqa_reduce_kernel'

def fbits(x):
    return '0x%08x' % struct.unpack('<I', struct.pack('<f', x))[0]

KA, KB, VA, VB = 0, 49152, 98304, 131072
T8 = 8192

sW, sG, sIDX, sBLK, sBP = 3, 4, 5, 6, 7
sC, sSUB, sROLE, sPOS, sBEG, sPH = 8, 9, 10, 11, 12, 13
sT1, sT2 = 14, 15
SRD_K, SRD_V, SRD_WQ, SRD_WO, SRD_WS, SRD_X = 44, 48, 52, 56, 60, 64
sKV, sMK, sMV, sTHR, sRET, sWO, sQ8, sT3 = 68, 69, 70, 71, 72, 73, 74, 75
sSC = 76
sWB, sLM = 78, 79
sAKV, sAX, sLO, sAMV = 96, 97, 98, 99
sHI, sHB = 100, 101
sID = 2
STAMP0 = 80

vL = 1
vAb, vA, vBb, vB = 2, 6, 10, 11
vKC, vVC, vDK, vDV, vDO = 12, 20, 24, 26, 27
vSUM, vTS, vE, vT = 29, 30, 32, 40
vQX, vLin, vDW, vKD4, vDX, vPK, vPV = 48, 49, 50, 54, 58, 62, 63
vOW = 12
F0, F1 = 64, 88
vO, vS, vQ, vNM, vP, vF = 64, 128, 160, 192, 208, 224
def acc(t, u): return (128 if u == 1 else 192) + 16 * t

class Q:
    def __init__(self, a):
        self.a = a; self.q = []
    def issue(self, tag, text):
        self.a(text); self.q.append(tag)
    def wait(self, tag):
        idx = [i for i, t in enumerate(self.q) if t == tag]
        if not idx:
            return
        n = len(self.q) - 1 - idx[-1]
        assert n <= 15, n
        self.a(f's_waitcnt lgkmcnt({n})')
        self.q = self.q[idx[-1] + 1:]
    def clear(self):
        self.q = []

def spread(ops, n):
    out = []; k = 0
    for i in range(n):
        e = (len(ops) * (i + 1)) // n
        out.append(ops[k:e]); k = e
    return out

def srd(b): return f's[{b}:{b+3}]'

def gen(stamps=False, pk=False, wq_fl='', wq0_fl='', wqe_fl=' nt', wo_fl='', kv_fl=' nt', st_fl=' sc1', LA=7, prio=None, lprio=None, cyc=False, nodma=False, nomfma=False, noread=False, qst=False,
        QLA=5, xat=3, allE=False, nokv=False, nosm=False, noard=False, wow=((13, (0,)), (14, (1,)), (15, (2,)), (16, (3, 4, 5)))):
    a = Asm()
    def stamp(k, force=False):
        if stamps and (force or not qst or k in (0, 1)):
            a(f's_mem{"" if cyc else "real"}time s[{STAMP0+2*k}:{STAMP0+2*k+1}]')
    kernel_begin(a, NAME)
    a(f'''
    s_cmp_ge_u32 s2, 256
    s_cbranch_scc1 L_exit
    s_load_dwordx16 s[16:31], s[0:1], 0
    s_load_dwordx8 s[32:39], s[0:1], 64
    s_load_dwordx2 s[40:41], s[0:1], 96
    ''')
    stamp(0)
    a(f'''
    v_lshrrev_b32 v2, 6, v0
    v_and_b32 v{vL}, 63, v0
    s_and_b32 s{sG}, s2, 3
    v_readfirstlane_b32 s{sW}, v2
    s_bfe_u32 s{sROLE}, s2, 0x10003
    s_lshl_b32 s{sG}, s{sG}, 1
    s_or_b32 s{sG}, s{sG}, s{sROLE}
    s_bfe_u32 s{sBLK}, s2, 0x10002
    s_lshr_b32 s{sBP}, s2, 4
    v_lshlrev_b32 v{vLin}, 4, v{vL}
    s_and_b32 s{sSUB}, s{sBP}, 3
    s_lshl_b32 s{sSUB}, s{sSUB}, 1
    s_lshr_b32 s{sQ8}, s{sBP}, 2
    s_lshl_b32 s{sQ8}, s{sQ8}, 3
    s_mov_b32 s{SRD_WQ+2}, 0x400000
    s_mov_b32 s{SRD_WQ+3}, 0x00020000
    s_mov_b32 s{SRD_X+2}, 0x100000
    s_mov_b32 s{SRD_X+3}, 0x00020000
    v_lshrrev_b32 v40, 4, v{vL}
    v_and_b32 v41, 15, v{vL}
    v_xor_b32 v42, v41, v40
    v_lshlrev_b32 v42, 4, v42
    v_lshl_add_u32 v{vDX}, v40, 10, v42
    v_lshl_add_u32 v{vKD4}, v40, 8, v42
    v_mov_b32 v{vDW}, v{vLin}
    ''')
    if allE: a(f's_mov_b32 s{sROLE}, 0')
    for j in range(1, 4):
        a(f'v_xor_b32 v{vDW+j}, {j*32}, v{vLin}')
        a(f'v_xor_b32 v{vDX+j}, {j*64}, v{vDX}')
        a(f'v_add_u32 v{vDW+j}, {j*7168}, v{vDW+j}')
        a(f'v_add_u32 v{vDX+j}, {j*3072}, v{vDX+j}')
    def kslot_ops(n, dst, shift, base):
        return [f's_add_u32 s{sT1}, s{sSUB}, {n}', f's_and_b32 s{sT1}, s{sT1}, 7',
                f's_add_u32 s{sT2}, s{sQ8}, {n}', f's_and_b32 s{sT2}, s{sT2}, 24',
                f's_or_b32 s{sT1}, s{sT1}, s{sT2}', f's_lshl_b32 s{sT1}, s{sT1}, {shift}',
                f's_add_u32 s{dst}, s{sT1}, s{base}']
    a(f'''
    s_bfe_u32 s{sT1}, s{sW}, 0x10001
    s_and_b32 s{sT2}, s{sW}, 1
    s_mul_i32 s{sLM}, s{sT1}, {KB}
    s_lshl_b32 s{sAMV}, s{sT1}, 15
    s_lshl_b32 s{sAX}, s{sBP}, 1
    s_add_u32 s{sAX}, s{sAX}, s{sT1}
    s_lshl_b32 s{sAKV}, s{sAX}, 3
    s_add_u32 s{sAKV}, s{sAKV}, s{sG}
    s_lshl_b32 s{sAKV}, s{sAKV}, 17
    s_lshl_b32 s{sAX}, s{sAX}, 1
    s_add_u32 s{sAX}, s{sAX}, s{sT2}
    s_lshl_b32 s{sAX}, s{sAX}, 14
    s_lshl_b32 s{sT2}, s{sT2}, 12
    s_add_u32 s{sLM}, s{sLM}, s{sT2}
    s_add_u32 s{sAMV}, s{sAMV}, s{sT2}
    s_add_u32 s{sAMV}, s{sAMV}, {VA}
    s_add_u32 s{sAKV}, s{sAKV}, s{sT2}
    s_and_b32 s{sT1}, s{sW}, 3
    s_lshl_b32 s{sT1}, s{sT1}, 15
    s_lshl_b32 s{sWB}, s{sG}, 10
    s_add_u32 s{sWB}, s{sWB}, s{sT1}
    s_lshl_b32 s{sLO}, s{sSUB}, 17
    s_lshl_b32 s{sHI}, s{sQ8}, 17
    s_add_u32 s{sHB}, s{sHI}, s{sWB}
    s_cmp_lt_u32 s{sW}, 4
    s_cbranch_scc1 L_setup
    ''')
    if lprio is not None: a(f's_setprio {lprio}')
    PARK = {}
    for i, u in enumerate([('K', 5), ('V', 3), ('K', 6), ('K', 7), ('K', 0), ('K', 1), ('V', 0), ('K', 2), ('V', 1), ('K', 3), ('V', 2), ('K', 4)]):
        PARK[u] = 64 + 16 * i
    class Loader:
        def __init__(self):
            self.vm = []; self.k = 0; self.ready = None
        def prep(self, u):
            so = (sT3, sRET)[self.k & 1]; self.k += 1
            kind, n = u[0], u[1]
            regs = len(u) > 2
            ops = []
            if kind == 'W':
                if n:
                    ops += [f's_add_u32 s{sLO}, s{sLO}, {1<<17}', f's_and_b32 s{sLO}, s{sLO}, {7<<17}']
                    if n % 8 == 0:
                        ops += [f's_add_u32 s{sHI}, s{sHI}, {8<<17}', f's_and_b32 s{sHI}, s{sHI}, {24<<17}', f's_add_u32 s{sHB}, s{sHI}, s{sWB}']
                ops.append(f's_add_u32 s{so}, s{sLO}, s{sHB}')
                m0 = f's_add_u32 m0, s{sLM}, {((n + 4) % 6)*T8}'
                S, vo, fl = SRD_WQ, lambda j: vDW + j, (u[2] if regs else wq_fl)
                regs = False
            elif kind == 'X':
                ops += [f's_add_u32 s{sT1}, s{sQ8}, {n*8}', f's_and_b32 s{sT1}, s{sT1}, 24', f's_lshl_b32 s{sT1}, s{sT1}, 5', f's_add_u32 s{so}, s{sT1}, s{sAX}']
                m0 = f's_add_u32 m0, s{sAMV}, {n*T8}'
                S, vo, fl = SRD_X, lambda j: vDX + j, ''
            else:
                ops.append(f's_add_u32 s{so}, s{sAKV}, {n*T8}')
                if kind == 'K':
                    m0 = f's_add_u32 m0, s{sLM}, {(n % 6)*T8}'
                    S, vo, fl = SRD_K, lambda j: vKD4 + j, kv_fl
                else:
                    m0 = f's_add_u32 m0, s{sAMV}, {(n % 4)*T8}'
                    S, vo, fl = SRD_V, lambda j: vDV, kv_fl
            if regs:
                r = PARK[(kind, n)]
                lds = [f'buffer_load_dwordx4 v[{r+4*j}:{r+4*j+3}], v{vo(j)}, {srd(S)}, s{so} offen offset:{j*1024}{fl}' for j in range(4)]
                m0 = None
            else:
                lds = [f'buffer_load_dwordx4 v{vo(j)}, {srd(S)}, s{so} offen offset:{j*1024}{fl} lds' for j in range(4)]
            return ops, m0, lds
        def run(self, seq):
            us = [i for i, x in enumerate(seq) if not callable(x)]
            for i, x in enumerate(seq):
                if callable(x):
                    x(); continue
                if self.ready is None:
                    ops, m0, lds = self.prep(x)
                    for t in ops + ([m0] if m0 else []): a(t)
                else:
                    lds = self.ready
                self.ready = None
                if not self.vm and self.first: self.first()
                nx = [k for k in us if k > i]
                brk = nx and any(getattr(seq[k], 'brk', False) for k in range(i + 1, nx[0]))
                skip = nodma and x[0] == 'W' and x[1] >= 6
                if not skip: a(lds[0])
                m0 = None
                if nx and not brk:
                    ops, m0, self.ready = self.prep(seq[nx[0]])
                    for t in ops: a(t)
                if not skip:
                    for t in lds[1:]: a(t)
                    self.vm.append(x[:2])
                if m0: a(m0)
        def need(self, u):
            if u not in self.vm: return 0 if nodma else 1/0
            return 4 * (len(self.vm) - 1 - self.vm.index(u))
    def sel_srd():
        a(f'''
        s_cmp_eq_u32 s{sBLK}, 0
        s_waitcnt lgkmcnt(0)
        s_cselect_b32 s{SRD_WQ}, s22, s32
        s_cselect_b32 s{SRD_WQ+1}, s23, s33
        s_cselect_b32 s{SRD_X}, s16, s26
        s_cselect_b32 s{SRD_X+1}, s17, s27
        ''')
    LE, LL = Loader(), Loader()
    LE.first = LL.first = sel_srd
    a(f's_cmp_lg_u32 s{sROLE}, 0')
    a('s_cbranch_scc1 L_initL')
    LE.run([('W', 0, wqe_fl), ('X', 0), ('W', 1, wqe_fl)])
    a('s_branch L_setup')
    a.label('L_initL')
    a(f's_mov_b32 s{sROLE}, 2')
    LL.run([('X', 1), ('X', 2), ('X', 3)])

    a.label('L_setup')
    a(f'''
    s_mov_b32 s{SRD_K+2}, 0x2000000
    s_mov_b32 s{SRD_K+3}, 0x00020000
    s_mov_b32 s{SRD_V+2}, 0x2000000
    s_mov_b32 s{SRD_V+3}, 0x00020000
    s_lshl_b32 s{sT1}, s{sBLK}, 3
    s_lshl_b32 s{sID}, s{sBP}, 4
    s_or_b32 s{sID}, s{sID}, s{sT1}
    s_or_b32 s{sID}, s{sID}, s{sG}
    v_xor_b32 v{vKD4+1}, 64, v{vKD4}
    v_xor_b32 v{vKD4+2}, 0x80, v{vKD4}
    v_xor_b32 v{vKD4+3}, 0xc0, v{vKD4}
    v_add_u32 v{vPK}, s{sLM}, v{vLin}
    v_add_u32 v{vPV}, s{sAMV}, v{vLin}
    s_mov_b32 s{SRD_WO+2}, 0x400000
    s_mov_b32 s{SRD_WO+3}, 0x00020000
    s_mov_b32 s{SRD_WS+2}, 0x10000000
    s_mov_b32 s{SRD_WS+3}, 0x00020000
    s_mov_b32 s{sSC}, {fbits(128 ** -0.5 * 1.4426950408889634)}
    s_mov_b32 s{sSC+1}, s{sSC}
    s_mov_b32 s{sTHR}, {fbits(1024.0)}
    s_and_b32 s42, s{sW}, 3
    s_lshr_b32 s43, s{sW}, 2
    ''')
    sH, sB = 42, 43
    a(f'''
    v_lshrrev_b32 v42, 5, v{vL}
    v_and_b32 v43, 31, v{vL}
    v_bfe_u32 v44, v{vL}, 2, 2
    v_and_b32 v45, 1, v40
    v_lshlrev_b32 v45, 4, v45
    v_bfe_u32 v46, v{vL}, 1, 1
    v_lshl_add_u32 v45, v46, 3, v45
    v_and_b32 v46, 1, v{vL}
    ''')
    a(f'''
    v_lshl_add_u32 v47, v46, 7, v45
    v_lshl_add_u32 v47, v44, 5, v47
    v_lshl_add_u32 v47, v44, 10, v47
    s_lshl_b32 s{sT1}, s{sH}, 8
    v_add_u32 v47, s{sT1}, v47
    s_mov_b32 s{sT1}, {KB}
    v_mad_u32_u24 v{vAb}, v42, s{sT1}, v47
    v_xor_b32 v{vAb+1}, 32, v{vAb}
    v_xor_b32 v{vAb+2}, 64, v{vAb}
    v_xor_b32 v{vAb+3}, 0x60, v{vAb}
    ''')
    a(f'''
    v_xor_b32 v47, v42, v41
    v_lshlrev_b32 v47, 4, v47
    v_lshl_add_u32 v47, v43, 8, v47
    v_add_u32 v{vBb}, {VA}, v47
    ''')
    a(f'''
    v_lshlrev_b32 v47, 3, v42
    v_xor_b32 v47, v47, v41
    v_lshlrev_b32 v47, 4, v47
    v_lshl_add_u32 v47, v43, 8, v47
    s_mul_i32 s{sMK}, s{sB}, {KB}
    v_add_u32 v{vKC}, s{sMK}, v47
    ''')
    for s in range(1, 8):
        a(f'v_xor_b32 v{vKC+s}, {s*16}, v{vKC}')
    a(f'''
    v_lshl_add_u32 v47, v46, 5, v45
    v_lshl_add_u32 v47, v44, 6, v47
    v_lshl_add_u32 v47, v44, 8, v47
    v_lshl_add_u32 v47, v42, 10, v47
    s_lshl_b32 s{sMV}, s{sB}, 15
    s_add_u32 s{sMV}, s{sMV}, {VA}
    v_add_u32 v{vVC}, s{sMV}, v47
    v_xor_b32 v{vVC+1}, 64, v{vVC}
    v_xor_b32 v{vVC+2}, 0x80, v{vVC}
    v_xor_b32 v{vVC+3}, 0xc0, v{vVC}
    ''')
    a(f'''
    v_xor_b32 v47, v41, v40
    v_lshlrev_b32 v47, 4, v47
    v_lshl_add_u32 v47, v40, 8, v47
    s_and_b32 s{sT1}, s{sH}, 1
    s_lshl_b32 s{sT2}, s{sT1}, 7
    v_xor_b32 v{vDK}, s{sT2}, v47
    v_xor_b32 v{vDK+1}, 64, v{vDK}
    v_lshlrev_b32 v47, 2, v40
    v_xor_b32 v47, v41, v47
    v_lshlrev_b32 v47, 4, v47
    v_lshl_add_u32 v{vDV}, v40, 8, v47
    s_lshl_b32 s{sT2}, s{sT1}, 6
    v_xor_b32 v{vDO}, s{sT2}, v{vLin}
    v_xor_b32 v{vDO+1}, 32, v{vDO}
    ''')
    a(f'''
    s_lshl_b32 s{sT1}, s{sH}, 11
    s_add_u32 s{sMK}, s{sMK}, s{sT1}
    s_add_u32 s{sMV}, s{sMV}, s{sT1}
    s_lshl_b32 s{sKV}, s{sBP}, 1
    s_add_u32 s{sKV}, s{sKV}, s{sB}
    s_lshl_b32 s{sKV}, s{sKV}, 3
    s_add_u32 s{sKV}, s{sKV}, s{sG}
    s_lshl_b32 s{sKV}, s{sKV}, 17
    s_add_u32 s{sKV}, s{sKV}, s{sT1}
    s_lshl_b32 s{sWO}, s{sG}, 19
    s_lshl_b32 s{sT1}, s{sW}, 11
    s_add_u32 s{sWO}, s{sWO}, s{sT1}
    s_and_b32 s{sT1}, s{sH}, 1
    s_mul_i32 s{sT2}, s{sT1}, {KB}
    s_add_u32 s{sT2}, s{sT2}, {KA + 5*T8}
    s_lshl_b32 s{sT1}, s{sT1}, 15
    s_add_u32 s{sT1}, s{sT1}, {VA + 3*T8}
    s_cmp_lt_u32 s{sH}, 2
    s_cselect_b32 s{sT1}, s{sT2}, s{sT1}
    v_add_u32 v{vQX}, s{sT1}, v{vLin}
    s_cmp_eq_u32 s{sBLK}, 0
    s_waitcnt lgkmcnt(0)
    s_cselect_b32 s{SRD_K}, s18, s28
    s_cselect_b32 s{SRD_K+1}, s19, s29
    s_cselect_b32 s{SRD_V}, s20, s30
    s_cselect_b32 s{SRD_V+1}, s21, s31
    s_cselect_b32 s{SRD_WO}, s24, s34
    s_cselect_b32 s{SRD_WO+1}, s25, s35
    s_mov_b32 s{SRD_WS}, s40
    s_mov_b32 s{SRD_WS+1}, s41
    s_cmp_lt_u32 s{sW}, 4
    s_cbranch_scc1 L_cons
    s_cmp_lg_u32 s{sROLE}, 0
    s_cbranch_scc1 L_ldL
    ''')
    def park_write(u):
        r = PARK[u]
        for j in range(4):
            if u[0] == 'K': a(f'ds_write_b128 v{vPK}, v[{r+4*j}:{r+4*j+3}] offset:{(u[1] % 6)*T8 + j*1024}')
            else: a(f'ds_write_b128 v{vPV}, v[{r+4*j}:{r+4*j+3}] offset:{(u[1] % 4)*T8 + j*1024}')
    QS = (1, 3, 7, 15, 23, 31)
    def bar(L, n):
        def f():
            if n < 31:
                w = L.need(('W', n + 1))
                if (n + 1) % 8 == 0: w = min(w, L.need(('X', (n + 1) // 8)))
                a(f's_waitcnt vmcnt({min(w, 63)})')
            a('s_barrier')
            if n == -1: stamp(1)
            if qst and n in QS: stamp(2 + QS.index(n), True)
        return f
    def wo_flavour():
        for j in range(1, 4):
            a(f'v_subrev_u32 v{vDW+j}, {j*7168}, v{vDW+j}')
        a(f'''
        s_and_b32 s{sT1}, s{sW}, 3
        s_lshl_b32 s{sT1}, s{sT1}, 12
        s_lshl_b32 s{sWB}, s{sG}, 19
        s_add_u32 s{sWB}, s{sWB}, s{sT1}
        ''')
    seq = [('W', n) for n in range(2, QLA - 1)]
    tailu = [('K', 0), ('K', 1), ('V', 0)]
    for n in range(-1, 32):
        seq.append(bar(LE, n))
        if n % 8 == xat and n < 24: seq.append(('X', n // 8 + 1))
        if n + QLA <= 31: seq.append(('W', n + QLA))
        elif tailu and n >= 26: seq.append(tailu.pop(0))
        if n == 30: seq.append(wo_flavour)
    assert not tailu
    seq.append(('K', 2))
    LE.run(seq)
    a(f's_waitcnt vmcnt({LE.need(("K", 0))})')
    a('s_branch L_getq')
    a.label('L_ldL')
    seq = [('X', 0), ('W', 0, wq0_fl), ('W', 1, wq0_fl)]
    seq += [u + ('r',) for u in [('K', 0), ('K', 1), ('V', 0), ('K', 2), ('V', 1), ('K', 3), ('V', 2), ('K', 4), ('K', 5), ('V', 3), ('K', 6), ('K', 7)]]
    seq += [('W', n) for n in range(2, QLA - 1)]
    for n in range(-1, 32):
        seq.append(bar(LL, n))
        if n + QLA <= 31: seq.append(('W', n + QLA))
        if n in (7, 15, 23): seq.append(lambda n=n: park_write(('V', n // 8)))
        if 26 <= n <= 30: seq.append(lambda n=n: park_write(('K', n - 26)))
        if n == 30: seq.append(wo_flavour)
    LL.run(seq)
    a.label('L_getq')
    stamp(2)
    if lprio is not None: a('s_setprio 0')
    a('s_waitcnt lgkmcnt(0)')
    a('s_barrier')
    for s in range(8):
        a(f'ds_read_b128 v[{vQ+4*s}:{vQ+4*s+3}], v{vQX} offset:{s*1024}')
    a('s_branch L_attn')

    q = Q(a)
    a.label('L_cons')
    a(f'''
    s_lshl_b32 s{sSUB}, s{sSUB}, 5
    s_mov_b32 s{sPH}, 0
    ''')
    def rdA(F, t):
        if noread: return
        for e in range(2):
            q.issue(('A', t), f'ds_read_b64_tr_b16 v[{F+4*t+2*e}:{F+4*t+2*e+1}], v{vA+t} offset:{e*4096}')
    def rdB(F, u):
        if noread: return
        q.issue(('B', u), f'ds_read_b128 v[{F+16+4*u}:{F+16+4*u+3}], v{vB} offset:{u*32768}')
    def pm(F, t, u, zero=False):
        if nomfma: return
        d = acc(t, u)
        c = '0' if zero else f'v[{d}:{d+15}]'
        a(f'v_mfma_f32_32x32x16_bf16 v[{d}:{d+15}], v[{F+4*t}:{F+4*t+3}], v[{F+16+4*u}:{F+16+4*u+3}], {c}')
    a.label('L_phase')
    a(f'''
    s_mov_b32 s{sC}, 0
    s_mov_b32 s{sPOS}, {4*T8}
    v_xor_b32 v{vB}, s{sSUB}, v{vBb}
    ''')
    for t in range(4): a(f'v_add_u32 v{vA+t}, s{sPOS}, v{vAb+t}')
    a('s_waitcnt vmcnt(0) lgkmcnt(0)')
    a('s_barrier')
    if stamps:
        a(f's_cmp_lg_u32 s{sPH}, 0')
        a('s_cbranch_scc1 L_st5')
        stamp(1)
        a('s_branch L_st1')
        a.label('L_st5')
        stamp(5)
        a.label('L_st1')
        a('s_waitcnt lgkmcnt(0)')
    rdB(F0, 1); rdA(F0, 0); rdB(F0, 0); rdA(F0, 1); rdA(F0, 2); rdA(F0, 3)
    def first_half(F, zero):
        q.wait(('A', 0)); pm(F, 0, 1, zero)
        a(f'''
        s_add_u32 s{sC}, s{sC}, 32
        s_add_u32 s{sT1}, s{sC}, s{sSUB}
        s_and_b32 s{sT1}, s{sT1}, 0xe0
        s_lshl_b32 s{sT2}, s{sC}, 5
        s_and_b32 s{sT2}, s{sT2}, 0x6000
        s_or_b32 s{sT1}, s{sT1}, s{sT2}
        ''')
        q.wait(('B', 0)); pm(F, 0, 0, zero)
        a(f'''
        s_add_u32 s{sPOS}, s{sPOS}, {T8}
        s_cmp_eq_u32 s{sPOS}, {6*T8}
        s_cselect_b32 s{sPOS}, 0, s{sPOS}
        v_xor_b32 v{vB}, s{sT1}, v{vBb}
        ''')
        q.wait(('A', 1)); pm(F, 1, 1, zero)
        for t in range(4): a(f'v_add_u32 v{vA+t}, s{sPOS}, v{vAb+t}')
        a(f's_cmp_eq_u32 s{sC}, 1024')
        pm(F, 1, 0, zero)
        a('s_waitcnt lgkmcnt(0)')
        q.clear()
        a('s_barrier')
    def second_half(F, Fn, zero):
        pm(F, 2, 1, zero)
        rdB(Fn, 1); rdA(Fn, 0); rdB(Fn, 0)
        pm(F, 3, 1, zero)
        rdA(Fn, 1); rdA(Fn, 2)
        pm(F, 2, 0, zero)
        rdA(Fn, 3)
        pm(F, 3, 0, zero)
    first_half(F0, True); second_half(F0, F1, True)
    a.label('L_cloop')
    saved = list(q.q)
    first_half(F1, False)
    a('s_cbranch_scc1 L_ctail')
    second_half(F1, F0, False)
    first_half(F0, False); second_half(F0, F1, False)
    assert q.q == saved
    a('s_branch L_cloop')
    q.clear()
    a.label('L_ctail')
    pm(F1, 2, 1)
    a(f's_cmp_lg_u32 s{sPH}, 0')
    a('s_cbranch_scc1 L_otail')
    def scale_pack(d, st):
        for i in range(0, 16, 2):
            if pk:
                a(f'v_pk_mul_f32 v[{d+i}:{d+i+1}], v[{d+i}:{d+i+1}], s[{sSC}:{sSC+1}]')
            else:
                a(f'v_mul_f32 v{d+i}, s{sSC}, v{d+i}')
                a(f'v_mul_f32 v{d+i+1}, s{sSC}, v{d+i+1}')
        for i in range(8):
            a(f'v_cvt_pk_bf16_f32 v{st+i}, v{d+2*i}, v{d+2*i+1}')
    QST = [64, 72, 80, 112]
    def qx(t):
        scale_pack(acc(t, 1), QST[t])
        for c2 in range(2):
            r = QST[t] + 4 * c2
            a(f'ds_write_b128 v{vQX}, v[{r}:{r+3}] offset:{(2*t+c2)*1024}')
    pm(F1, 3, 1)
    qx(0)
    pm(F1, 2, 0)
    qx(1)
    pm(F1, 3, 0)
    qx(2); qx(3)
    stamp(2)
    a('s_waitcnt lgkmcnt(0)')
    a('s_barrier')
    for t in range(4):
        scale_pack(acc(t, 0), vQ + 8 * t)
    a(f'''
    s_mov_b32 s{sPH}, 1
    s_lshr_b32 s{sSUB}, s{sSUB}, 5
    ''')

    a.label('L_attn')
    if prio is not None:
        a(f's_cmp_lt_u32 s{sW}, 4')
        a('s_cbranch_scc1 L_noprio')
        a(f's_setprio {prio}')
        a.label('L_noprio')
    jobs = []
    for r in range(-1, 17):
        if r + 1 <= 15:
            for s in range(8): jobs.append((r, 'K', r + 1, s))
        if 1 <= r:
            order = [(c, dt) for c in range(2) for dt in range(4)] if r < 16 else [(c, dt) for dt in range(4) for c in range(2)]
            for c, dt in order: jobs.append((r, 'V', r - 1, (c, dt)))
    vm = [('K', 0)] * 4 + [('K', 1)] * 4 + [('V', 0)] * 4 + [('K', 2)] * 4
    state = dict(rd=0, pub=-1)
    def rd(j):
        r, kind, t, ix = jobs[j]
        F = vF + (j & 7) * 4
        if noard and 2 <= r <= 15: return
        if kind == 'K':
            q.issue(j, f'ds_read_b128 v[{F}:{F+3}], v{vKC+ix} offset:{(t % 6)*T8}')
        else:
            c, dt = ix
            for e in range(2):
                q.issue(j, f'ds_read_b64_tr_b16 v[{F+2*e}:{F+2*e+1}], v{vVC+dt} offset:{(t % 4)*T8 + (16*c+8*e)*256}')
    def reads_upto(j, la=LA):
        while state['rd'] < len(jobs) and state['rd'] <= j + la and jobs[state['rd']][0] <= state['pub']:
            n = 2 if jobs[state['rd']][1] == 'V' else 1
            if len(q.q) + n > 15: break
            rd(state['rd']); state['rd'] += 1
    def mm(j):
        r, kind, t, ix = jobs[j]
        F = vF + (j & 7) * 4
        q.wait(j)
        if kind == 'K':
            d = vS + (t & 1) * 16
            if ix == 0: c = '0' if t == 0 else f'v[{vNM}:{vNM+15}]'
            else: c = f'v[{d}:{d+15}]'
            a(f'v_mfma_f32_32x32x16_bf16 v[{d}:{d+15}], v[{F}:{F+3}], v[{vQ+4*ix}:{vQ+4*ix+3}], {c}')
        else:
            c, dt = ix
            d = vO + dt * 16
            p = vP + (t & 1) * 8 + c * 4
            cc = '0' if (t == 0 and c == 0) else f'v[{d}:{d+15}]'
            a(f'v_mfma_f32_32x32x16_bf16 v[{d}:{d+15}], v[{F}:{F+3}], v[{p}:{p+3}], {cc}')
    def fin(par, i, p0):
        r = []
        if i == 2:
            if pk: r.append(f'v_pk_add_f32 v[{vTS}:{vTS+1}], v[{vE}:{vE+1}], v[{p0}:{p0+1}]')
            else: r += [f'v_add_f32 v{vTS}, v{vE}, v{p0}', f'v_add_f32 v{vTS+1}, v{vE+1}, v{p0+1}']
        elif i > 2:
            if pk: r.append(f'v_pk_add_f32 v[{vTS}:{vTS+1}], v[{vTS}:{vTS+1}], v[{p0}:{p0+1}]')
            else: r += [f'v_add_f32 v{vTS}, v{vTS}, v{p0}', f'v_add_f32 v{vTS+1}, v{vTS+1}, v{p0+1}']
        r.append(f'v_cvt_pk_bf16_f32 v{vP+par*8+i//2}, v{p0}, v{p0+1}')
        return r
    def softmax_ops(par, addm=False):
        S = vS + par * 16
        ops = []
        for i in range(0, 16, 2):
            e0 = vE + (i & 7)
            if addm:
                ops.append(f'v_add_f32 v{S+i}, v{S+i}, v{vNM}')
                ops.append(f'v_add_f32 v{S+i+1}, v{S+i+1}, v{vNM}')
            ops.append(f'v_exp_f32 v{e0}, v{S+i}')
            ops.append(f'v_exp_f32 v{e0+1}, v{S+i+1}')
            if i >= 2:
                ops += fin(par, i - 2, vE + ((i - 2) & 7))
        ops += fin(par, 14, vE + 6)
        ops.append(f'v_add_f32 v{vTS}, v{vTS}, v{vTS+1}')
        return ops
    def max_ops(S):
        r = [f'v_max3_f32 v{vT}, v{S}, v{S+1}, v{S+2}', f'v_max3_f32 v{vT+1}, v{S+3}, v{S+4}, v{S+5}']
        for i in (6, 10):
            r.append(f'v_max3_f32 v{vT}, v{vT}, v{S+i}, v{S+i+1}')
            r.append(f'v_max3_f32 v{vT+1}, v{vT+1}, v{S+i+2}, v{S+i+3}')
        r.append(f'v_max3_f32 v{vT}, v{vT}, v{S+14}, v{S+15}')
        r.append(f'v_max_f32 v{vT}, v{vT}, v{vT+1}')
        r.append(f'v_mov_b32 v{vT+1}, v{vT}')
        r.append(f'v_permlane32_swap_b32 v{vT}, v{vT+1}')
        return r
    EW = {-1: [('K', 3), ('V', 1)], 0: [('K', 4), ('V', 2), ('K', 5)], 1: [('V', 3), ('K', 6), ('K', 7)]}
    LW = {-1: [None, None], 0: [('K', 5), ('V', 3), ('K', 6)], 1: [('K', 7), None, None]}
    alts = []
    def kv_group(kind, t):
        if kind == 'V':
            return ([f's_add_u32 m0, s{sMV}, {(t % 4)*T8}', f's_add_u32 s{sT3}, s{sKV}, {t*T8}'],
                    [f'buffer_load_dwordx4 v{vDV}, {srd(SRD_V)}, s{sT3} offen offset:{j*1024}{kv_fl} lds' for j in range(2)], ('V', t))
        return ([f's_add_u32 m0, s{sMK}, {(t % 6)*T8}', f's_add_u32 s{sT3}, s{sKV}, {t*T8}'],
                [f'buffer_load_dwordx4 v{vDK+j}, {srd(SRD_K)}, s{sT3} offen offset:{j*1024}{kv_fl} lds' for j in range(2)], ('K', t))
    def issue_groups(w):
        flat = []
        if w in EW:
            for k, (e, l) in enumerate(zip(EW[w], LW[w])):
                pre, lds, tag = kv_group(*e)
                nm = f'{w+1}_{k}'
                flat.append(([f's_cmp_lg_u32 s{sROLE}, 0', f's_cbranch_scc1 L_{"alt" if l else "ret"}{nm}'] + pre + lds + [f'L_ret{nm}:'], [tag, tag]))
                flat.append(([], []))
                if l: alts.append((nm, l))
            return flat
        g = []
        if w + 2 <= 15: g.append(kv_group('V', w + 2))
        if w + 6 <= 15: g.append(kv_group('K', w + 6))
        if nokv: g = []
        for n in dict(wow).get(w, ()):
            assert w >= 10 + n
            g.append((kslot_ops(n, sT3, 14, sWO) + [f's_add_u32 m0, s{sMK}, {((4 + n) % 6)*T8}'],
                      [f'buffer_load_dwordx4 v{vDO+j}, {srd(SRD_WO)}, s{sT3} offen offset:{j*1024}{wo_fl} lds' for j in range(2)], ('W', n)))
        for pre, lds, tag in g:
            flat.append((pre + [lds[0]], [tag])); flat.append(([lds[1]], [tag]))
        return flat
    def emit_pend(pend, n=1):
        while pend and n:
            ins, tags = pend.pop(0)
            for t in ins:
                if t.endswith(':'): a.label(t[:-1])
                else: a(t)
            vm.extend(tags)
            n -= 1
    def barrier(r):
        need = [('K', r + 1), ('V', r - 1)]
        idx = [i for i, t in enumerate(vm) if t in need]
        n = len(vm) - 1 - max(idx) if idx else 63
        a(f's_waitcnt vmcnt({n}) lgkmcnt(0)')
        q.clear()
        a('s_barrier')
        state['pub'] = r

    state['pub'] = -1
    reads_upto(-1, 8)
    pend = issue_groups(-1)
    j = 0
    for r in range(-1, 17):
        rj = [k for k in range(len(jobs)) if jobs[k][0] == r]
        n = len(rj)
        if r == -1: chunks = [[] for _ in rj]
        elif r == 0: chunks = spread(softmax_ops(0, True), n)
        elif r == 1: chunks = [[]] + spread(softmax_ops(1), n - 1)
        elif r <= 15 and not nosm: chunks = spread(softmax_ops(r & 1), n)
        else: chunks = [[] for _ in rj]
        if r == 15:
            extra = [f'v_lshrrev_b32 v42, 5, v{vL}', f'v_and_b32 v43, 15, v{vL}', f'v_lshlrev_b32 v42, 1, v42',
                     f'v_xor_b32 v42, v42, v43', f'v_lshlrev_b32 v42, 4, v42', f'v_and_b32 v43, 31, v{vL}',
                     f'v_lshl_add_u32 v42, v43, 8, v42',
                     f's_lshr_b32 s{sT1}, s{sQ8}, 3', f's_sub_u32 s{sT1}, s{sH}, s{sT1}', f's_and_b32 s{sT1}, s{sT1}, 3',
                     f's_lshl_b32 s{sT1}, s{sT1}, 13', f's_lshl_b32 s{sT2}, s{sB}, 15', f's_add_u32 s{sT1}, s{sT1}, s{sT2}',
                     f's_add_u32 s{sRET+0}, s{sT1}, {VA}', f'v_add_u32 v{vOW}, s{sRET}, v42']
            extra += [f'v_xor_b32 v{vOW+k}, {(4*(k>>1)+(k&1))*16}, v{vOW}' for k in range(1, 8)]
            late15 = extra
        for i, k in enumerate(rj):
            mm(k)
            if r == 16:
                c, dt = jobs[k][3]
                reads_upto(k)
                emit_pend(pend, 1 if i < 2 else -1)
                if i == 3:
                    a('s_waitcnt lgkmcnt(0)')
                    q.clear()
                    a('s_barrier')
                if c == 1 and dt >= 1:
                    fin_dt(dt - 1)
                continue
            reads_upto(k)
            emit_pend(pend)
            for t in chunks[i]: a(t)
            if i == n - 5:
                emit_pend(pend, -1)
                assert state['rd'] > rj[-1]
                if r == -1: stamp(3)
                if r == 15: stamp(4)
                barrier(r + 1)
                reads_upto(k)
                pend = issue_groups(r + 1)
        if r == -1:
            for t in max_ops(vS): a(t)
            a(f'v_max_f32 v{vT}, v{vT}, v{vT+1}')
            a(f'v_sub_f32 v{vNM}, 0, v{vT}')
            for i in range(1, 16): a(f'v_mov_b32 v{vNM+i}, v{vNM}')
        elif r == 0:
            a(f'v_mov_b32 v{vSUM}, v{vTS}')
        elif r <= 15:
            a(f's_mov_b32 s{sRET}, {r}')
            a(f'v_cmp_nge_f32 vcc, s{sTHR}, v{vTS}')
            a(f's_cbranch_vccnz L_slow{r & 1}')
            a.label(f'L_back{r}')
            a(f'v_add_f32 v{vSUM}, v{vSUM}, v{vTS}')
        if r == 15:
            a(f'v_mov_b32 v{vT}, v{vSUM}')
            for t in late15[:2]: a(t)
            a(f'v_permlane32_swap_b32 v{vT}, v{vSUM}')
            for t in late15[2:4]: a(t)
            a(f'v_add_f32 v{vSUM}, v{vSUM}, v{vT}')
            a(f'v_rcp_f32 v{vTS}, v{vSUM}')
            rest15 = late15[4:] + [f'v_mov_b32 v{vTS+1}, v{vTS}']
            def fin_dt(dt):
                if dt == 0:
                    for t in rest15: a(t)
                d = vO + dt * 16
                st = vS + dt * 8
                for i in range(0, 16, 2):
                    if pk: a(f'v_pk_mul_f32 v[{d+i}:{d+i+1}], v[{d+i}:{d+i+1}], v[{vTS}:{vTS+1}]')
                    else:
                        a(f'v_mul_f32 v{d+i}, v{vTS}, v{d+i}')
                        a(f'v_mul_f32 v{d+i+1}, v{vTS}, v{d+i+1}')
                for i in range(8):
                    a(f'v_cvt_pk_bf16_f32 v{st+i}, v{d+2*i}, v{d+2*i+1}')
                for c2 in range(2):
                    a(f'ds_write_b128 v{vOW+2*dt+c2}, v[{st+4*c2}:{st+4*c2+3}]')
    fin_dt(3)
    if prio is not None: a('s_setprio 0')
    a(f'''
    s_lshl_b32 s{sT1}, s{sSUB}, 5
    s_cmp_lt_u32 s{sW}, 4
    s_cselect_b32 s{sSUB}, s{sT1}, s{sSUB}
    s_cbranch_scc1 L_phase
    ''')
    if lprio is not None: a(f's_setprio {lprio}')
    a(f's_mov_b32 s{sC}, 6')
    a(f's_add_u32 s{sPOS}, s{sLM}, {4*T8}')
    a(f's_add_u32 s{sBEG}, s{sLM}, {6*T8}')
    for t in kslot_ops(6, sRET, 14, sWB): a(t)
    a('s_waitcnt vmcnt(0) lgkmcnt(0)')
    a('s_barrier')
    stamp(5); stamp(6)
    a.label('L_wo')
    a(f'''
    s_mov_b32 m0, s{sPOS}
    s_mov_b32 s{sT3}, s{sRET}
    s_waitcnt vmcnt(16)
    s_barrier
    ''')
    wl = [f'buffer_load_dwordx4 v{vDW+j}, {srd(SRD_WO)}, s{sT3} offen offset:{j*1024}{wo_fl} lds' for j in range(4)]
    if not nodma: a(wl[0])
    a(f'''
    s_add_u32 s{sPOS}, s{sPOS}, {T8}
    s_cmp_eq_u32 s{sPOS}, s{sBEG}
    s_cselect_b32 s{sPOS}, s{sLM}, s{sPOS}
    s_add_u32 s{sC}, s{sC}, 1
    ''')
    if not nodma: a(wl[1])
    for t in kslot_ops(f's{sC}', sRET, 14, sWB): a(t)
    a(f's_cmp_lt_u32 s{sC}, 32')
    if not nodma: a(wl[2]); a(wl[3])
    a('s_cbranch_scc1 L_wo')
    for n in (16, 12, 8, 4, 0):
        a(f's_waitcnt vmcnt({n})')
        a('s_barrier')
    a('s_branch L_fin')

    a.label('L_otail')
    stamp(6)
    a(f'''
    s_lshl_b32 s{sT1}, s2, 16
    s_lshl_b32 s{sT2}, s{sW}, 14
    s_add_u32 s16, s{sT1}, s{sT2}
    s_add_u32 s17, s16, 4096
    s_add_u32 s18, s16, 8192
    s_add_u32 s19, s16, 12288
    ''')
    def st(t, u):
        d = acc(t, u)
        for i in range(8):
            a(f'v_cvt_pk_bf16_f32 v{d+i}, v{d+2*i}, v{d+2*i+1}')
        for c2 in range(2):
            a(f'buffer_store_dwordx4 v[{d+4*c2}:{d+4*c2+3}], v{vLin}, {srd(SRD_WS)}, s{16+2*u+(t>>1)} offen offset:{(t&1)*2048+c2*1024}{st_fl}')
    pm(F1, 3, 1)
    st(0, 1)
    pm(F1, 2, 0)
    st(0, 0)
    pm(F1, 3, 0)
    st(1, 1); st(1, 0); st(2, 1); st(3, 1); st(2, 0); st(3, 0)
    a.label('L_fin')
    if stamps:
        a('s_waitcnt vmcnt(0)')
        stamp(7)
        a('s_waitcnt lgkmcnt(0)')
        for k in range(8):
            a(f'v_mov_b32 v{48+k}, s{STAMP0+2*k}')
        a(f'''
        s_lshl_b32 s{sT1}, s2, 3
        s_add_u32 s{sT1}, s{sT1}, s{sW}
        s_lshl_b32 s{sT1}, s{sT1}, 5
        s_add_u32 s{sT1}, s{sT1}, 0x8000000
        v_mov_b32 v41, 0
        v_cmp_eq_u32 vcc, 0, v{vL}
        s_and_saveexec_b64 s[42:43], vcc
        buffer_store_dwordx4 v[48:51], v41, {srd(SRD_WS)}, s{sT1} offen
        buffer_store_dwordx4 v[52:55], v41, {srd(SRD_WS)}, s{sT1} offen offset:16
        ''')
    a.label('L_exit')
    a('s_endpgm')

    for nm, u in alts:
        a.label(f'L_alt{nm}')
        a(f's_cmp_eq_u32 s{sROLE}, 1')
        a(f's_cbranch_scc1 L_ret{nm}')
        park_write(u)
        a(f's_branch L_ret{nm}')

    for par in range(2):
        S = vS + par * 16
        a.label(f'L_slow{par}')
        a('s_nop 7')
        a('s_nop 7')
        for t in max_ops(S): a(t)
        a(f'v_max3_f32 v{vT}, v{vT}, v{vT+1}, 0')
        a(f'v_exp_f32 v{vT+1}, -v{vT}')
        for i in range(32):
            a(f'v_sub_f32 v{vS+i}, v{vS+i}, v{vT}')
        for i in range(16):
            a(f'v_sub_f32 v{vNM+i}, v{vNM+i}, v{vT}')
        for i in range(64):
            a(f'v_mul_f32 v{vO+i}, v{vT+1}, v{vO+i}')
        a(f'v_mul_f32 v{vSUM}, v{vT+1}, v{vSUM}')
        for t in softmax_ops(par): a(t)
        rs = [r for r in range(1, 16) if (r & 1) == par]
        for r in rs[:-1]:
            a(f's_cmp_eq_u32 s{sRET}, {r}')
            a(f's_cbranch_scc1 L_back{r}')
        a(f's_branch L_back{rs[-1]}')

    kernel_begin(a, RED)
    a(f'''
    s_cmp_ge_u32 s2, 512
    s_cbranch_scc1 L_rexit
    s_load_dwordx2 s[4:5], s[0:1], 80
    s_load_dwordx2 s[8:9], s[0:1], 96
    v_and_b32 v1, 7, v0
    v_bfe_u32 v2, v0, 3, 3
    v_bfe_u32 v3, v0, 6, 1
    v_lshrrev_b32 v6, 7, v0
    v_lshl_add_u32 v2, v6, 3, v2
    v_lshlrev_b32 v4, 10, v1
    v_lshl_add_u32 v4, v3, 9, v4
    v_lshl_add_u32 v4, v2, 4, v4
    v_lshlrev_b32 v5, 11, v2
    v_lshl_add_u32 v5, v3, 7, v5
    v_lshl_add_u32 v5, v1, 4, v5
    s_lshr_b32 s12, s2, 4
    s_lshl_b32 s14, s12, 19
    s_bfe_u32 s13, s2, 0x30001
    s_lshl_b32 s15, s13, 13
    s_add_u32 s14, s14, s15
    s_and_b32 s17, s2, 1
    s_lshl_b32 s15, s17, 8
    s_add_u32 s14, s14, s15
    s_lshr_b32 s16, s12, 1
    s_lshl_b32 s16, s16, 17
    s_and_b32 s15, s2, 3
    s_lshl_b32 s15, s15, 15
    s_add_u32 s16, s16, s15
    s_and_b32 s15, s12, 1
    s_lshl_b32 s15, s15, 10
    s_add_u32 s16, s16, s15
    s_bfe_u32 s15, s2, 0x20002
    s_lshl_b32 s15, s15, 8
    s_add_u32 s16, s16, s15
    s_mov_b32 s6, 0x200000
    s_mov_b32 s7, 0x00020000
    s_mov_b32 s10, 0x10000000
    s_mov_b32 s11, 0x00020000
    s_mov_b32 s18, 0xffff0000
    s_waitcnt lgkmcnt(0)
    ''')
    for g in range(8):
        a(f'buffer_load_dwordx4 v[{8+4*g}:{11+4*g}], v4, s[8:11], s14 offen')
        if g < 7: a('s_add_u32 s14, s14, 65536')
    for g in range(8):
        a(f's_waitcnt vmcnt({7-g})')
        for i in range(4):
            r = 8 + 4 * g + i
            if g == 0:
                a(f'v_lshlrev_b32 v{40+2*i}, 16, v{r}')
                a(f'v_and_b32 v{41+2*i}, s18, v{r}')
            else:
                a(f'v_lshlrev_b32 v6, 16, v{r}')
                a(f'v_and_b32 v7, s18, v{r}')
                a(f'v_add_f32 v{40+2*i}, v{40+2*i}, v6')
                a(f'v_add_f32 v{41+2*i}, v{41+2*i}, v7')
    for i in range(4):
        a(f'v_cvt_pk_bf16_f32 v{48+i}, v{40+2*i}, v{41+2*i}')
    a('buffer_store_dwordx4 v[48:51], v5, s[4:7], s16 offen')
    a.label('L_rexit')
    a('s_endpgm')

    lines, n = hz.fix(a.lines, verbose='-v' in sys.argv)
    print('hazard nops inserted (states):', n)
    body = '\n'.join(lines) + '\n'
    return file_text([(NAME, 256, 512, 163840), (RED, 512, 256, 0)], body,
                     [descriptor(NAME, 256, 256), descriptor(RED, 56, 56, 24)])

if __name__ == '__main__':
    open('k3.s', 'w').write(gen(stamps=False))
    V = {'s': {}, 'q': dict(qst=True), 'c': dict(cyc=True), 'q_pp': dict(qst=True, wq_fl='', wqe_fl=''), 'q_pn': dict(qst=True, wqe_fl=''), 'q_np': dict(qst=True, wq_fl=''),
         's_pp': dict(wq_fl='', wqe_fl=''), 's_np': dict(wq_fl='')}
    for k, p in V.items():
        open(f'k3{k}.s', 'w').write(gen(stamps=True, **p))
```

```python
import sys, struct
from asmlib import *
import hz

BASE = 'concat_heads__gqa_block_cached__gqa_block_cached__near_ridge'
NAME = BASE + '_kernel'
RED = 'gqa_reduce_kernel'

def fbits(x):
    return '0x%08x' % struct.unpack('<I', struct.pack('<f', x))[0]

KA, KB, VA, VB = 0, 49152, 98304, 131072
T8 = 8192

sW, sG, sIDX, sBLK, sBP = 3, 4, 5, 6, 7
sC, sSUB, sROLE, sPOS, sBEG, sPH = 8, 9, 10, 11, 12, 13
sT1, sT2 = 14, 15
SRD_K, SRD_V, SRD_WQ, SRD_WO, SRD_WS, SRD_X = 44, 48, 52, 56, 60, 64
sKV, sMK, sMV, sTHR, sRET, sWO, sQ8, sT3 = 68, 69, 70, 71, 72, 73, 74, 75
sSC = 76
sWB, sLM = 78, 79
sAKV, sAX, sLO, sAMV = 96, 97, 98, 99
sHI, sHB = 100, 101
sID = 2
STAMP0 = 80

vL = 1
vAb, vA, vBb, vB = 2, 6, 10, 11
vKC, vVC, vDK, vDV, vDO = 12, 20, 24, 26, 27
vSUM, vTS, vE, vT = 29, 30, 32, 40
vQX, vLin, vDW, vKD4, vDX, vPK, vPV = 48, 49, 50, 54, 58, 62, 63
vOW = 12
F0, F1 = 64, 88
vO, vS, vQ, vNM, vP, vF = 64, 128, 160, 192, 208, 224
def acc(t, u): return (128 if u == 1 else 192) + 16 * t

class Q:
    def __init__(self, a):
        self.a = a; self.q = []
    def issue(self, tag, text):
        self.a(text); self.q.append(tag)
    def wait(self, tag):
        idx = [i for i, t in enumerate(self.q) if t == tag]
        if not idx:
            return
        n = len(self.q) - 1 - idx[-1]
        assert n <= 15, n
        self.a(f's_waitcnt lgkmcnt({n})')
        self.q = self.q[idx[-1] + 1:]
    def clear(self):
        self.q = []

def spread(ops, n):
    out = []; k = 0
    for i in range(n):
        e = (len(ops) * (i + 1)) // n
        out.append(ops[k:e]); k = e
    return out

def srd(b): return f's[{b}:{b+3}]'

def gen(stamps=False, pk=False, wq_fl='', wq0_fl='', wqe_fl=' nt', wo_fl='', kv_fl=' nt', st_fl=' sc1', LA=7, prio=None, lprio=None, cyc=False, both=False, ast=None, nodma=False, nomfma=False, noread=False, qst=False,
        QLA=5, xat=3, allE=False, plan='p12', rot=None, clsbp=False, nokv=False, nosm=False, noard=False, wow=((13, (0,)), (14, (1,)), (15, (2,)), (16, (3, 4, 5)))):
    a = Asm()
    def stamp(k, force=False):
        if stamps and both:
            c = {0: 7, 3: 1, 4: 2, 6: 5}.get(k)
            if c is not None:
                a(f's_memrealtime s[{STAMP0+2*k}:{STAMP0+2*k+1}]')
                a(f's_memtime s[{STAMP0+2*c}:{STAMP0+2*c+1}]')
            return
        if ast and not force and k != 0: return
        if stamps and (force or not qst or k in (0, 1)):
            a(f's_mem{"" if cyc else "real"}time s[{STAMP0+2*k}:{STAMP0+2*k+1}]')
    kernel_begin(a, NAME)
    a(f'''
    s_cmp_ge_u32 s2, 256
    s_cbranch_scc1 L_exit
    s_load_dwordx16 s[16:31], s[0:1], 0
    s_load_dwordx8 s[32:39], s[0:1], 64
    s_load_dwordx2 s[40:41], s[0:1], 96
    ''')
    stamp(0)
    a(f'''
    v_lshrrev_b32 v2, 6, v0
    v_and_b32 v{vL}, 63, v0
    s_and_b32 s{sG}, s2, 3
    v_readfirstlane_b32 s{sW}, v2
    s_bfe_u32 s{sROLE}, s2, 0x10003
    s_lshl_b32 s{sG}, s{sG}, 1
    s_or_b32 s{sG}, s{sG}, s{sROLE}
    s_bfe_u32 s{sBLK}, s2, 0x10002
    s_lshr_b32 s{sBP}, s2, 4
    v_lshlrev_b32 v{vLin}, 4, v{vL}
    s_and_b32 s{sSUB}, s{sBP}, 3
    s_lshl_b32 s{sSUB}, s{sSUB}, 1
    s_lshr_b32 s{sQ8}, s{sBP}, 2
    s_lshl_b32 s{sQ8}, s{sQ8}, 3
    s_mov_b32 s{SRD_WQ+2}, 0x400000
    s_mov_b32 s{SRD_WQ+3}, 0x00020000
    s_mov_b32 s{SRD_X+2}, 0x100000
    s_mov_b32 s{SRD_X+3}, 0x00020000
    v_lshrrev_b32 v40, 4, v{vL}
    v_and_b32 v41, 15, v{vL}
    v_xor_b32 v42, v41, v40
    v_lshlrev_b32 v42, 4, v42
    v_lshl_add_u32 v{vDX}, v40, 10, v42
    v_lshl_add_u32 v{vKD4}, v40, 8, v42
    v_mov_b32 v{vDW}, v{vLin}
    ''')
    if clsbp: a(f's_and_b32 s{sROLE}, s{sBP}, 1')
    if allE: a(f's_mov_b32 s{sROLE}, 0')
    for j in range(1, 4):
        a(f'v_xor_b32 v{vDW+j}, {j*32}, v{vLin}')
        a(f'v_xor_b32 v{vDX+j}, {j*64}, v{vDX}')
        a(f'v_add_u32 v{vDW+j}, {j*7168}, v{vDW+j}')
        a(f'v_add_u32 v{vDX+j}, {j*3072}, v{vDX+j}')
    def kslot_ops(n, dst, shift, base):
        return [f's_add_u32 s{sT1}, s{sSUB}, {n}', f's_and_b32 s{sT1}, s{sT1}, 7',
                f's_add_u32 s{sT2}, s{sQ8}, {n}', f's_and_b32 s{sT2}, s{sT2}, 24',
                f's_or_b32 s{sT1}, s{sT1}, s{sT2}', f's_lshl_b32 s{sT1}, s{sT1}, {shift}',
                f's_add_u32 s{dst}, s{sT1}, s{base}']
    a(f'''
    s_bfe_u32 s{sT1}, s{sW}, 0x10001
    s_and_b32 s{sT2}, s{sW}, 1
    s_mul_i32 s{sLM}, s{sT1}, {KB}
    s_lshl_b32 s{sAMV}, s{sT1}, 15
    s_lshl_b32 s{sAX}, s{sBP}, 1
    s_add_u32 s{sAX}, s{sAX}, s{sT1}
    s_lshl_b32 s{sAKV}, s{sAX}, 3
    s_add_u32 s{sAKV}, s{sAKV}, s{sG}
    s_lshl_b32 s{sAKV}, s{sAKV}, 17
    s_lshl_b32 s{sAX}, s{sAX}, 1
    s_add_u32 s{sAX}, s{sAX}, s{sT2}
    s_lshl_b32 s{sAX}, s{sAX}, 14
    s_lshl_b32 s{sT2}, s{sT2}, 12
    s_add_u32 s{sLM}, s{sLM}, s{sT2}
    s_add_u32 s{sAMV}, s{sAMV}, s{sT2}
    s_add_u32 s{sAMV}, s{sAMV}, {VA}
    s_add_u32 s{sAKV}, s{sAKV}, s{sT2}
    s_and_b32 s{sT1}, s{sW}, 3
    s_lshl_b32 s{sT1}, s{sT1}, 15
    s_lshl_b32 s{sWB}, s{sG}, 10
    s_add_u32 s{sWB}, s{sWB}, s{sT1}
    s_lshl_b32 s{sLO}, s{sSUB}, 17
    s_lshl_b32 s{sHI}, s{sQ8}, 17
    s_add_u32 s{sHB}, s{sHI}, s{sWB}
    s_cmp_lt_u32 s{sW}, 4
    s_cbranch_scc1 L_setup
    ''')
    if lprio is not None: a(f's_setprio {lprio}')
    K_, V_ = (lambda n: ('K', n)), (lambda n: ('V', n))
    PLANS = {
        'p12': dict(order=[K_(0), K_(1), V_(0), K_(2), V_(1), K_(3), V_(2), K_(4), K_(5), V_(3), K_(6), K_(7)], tail={},
                    win={-1: [None, None], 0: [('p', K_(5)), ('p', V_(3)), ('p', K_(6))], 1: [('p', K_(7)), None, None]}),
        'p10': dict(order=[K_(0), K_(1), V_(0), K_(2), V_(1), K_(3), K_(5), V_(3), K_(6), K_(7)], tail={27: V_(2), 30: K_(4)},
                    win={-1: [None, None], 0: [('p', K_(5)), ('p', V_(3)), ('p', K_(6))], 1: [('p', K_(7)), None, None]}),
        'p8': dict(order=[K_(0), K_(1), V_(0), K_(2), K_(5), V_(3), K_(6), K_(7)], tail={27: V_(1), 28: V_(2), 29: K_(3)},
                   win={-1: [None, ('d', K_(4))], 0: [('p', K_(5)), ('p', V_(3)), ('p', K_(6))], 1: [('p', K_(7)), None, None]}),
        'p8b': dict(order=[K_(0), K_(1), V_(0), K_(2), K_(5), V_(3), K_(6), K_(7)], tail={27: V_(1), 29: K_(3), 30: V_(2), 31: K_(4)},
                   win={-1: [None, None], 0: [('p', K_(5)), ('p', V_(3)), ('p', K_(6))], 1: [('p', K_(7)), None, None]}),
        'p6': dict(order=[K_(0), K_(1), V_(0), K_(2), K_(5), V_(3)], tail={27: V_(1), 28: V_(2), 29: K_(3)},
                   win={-1: [None, ('d', K_(4))], 0: [('p', K_(5)), ('p', V_(3)), ('d', K_(6))], 1: [None, None, ('d', K_(7))]}),
        'p9': dict(order=[K_(0), K_(1), V_(0), K_(2), K_(3), K_(5), V_(3), K_(6), K_(7)], tail={27: V_(1), 28: V_(2), 30: K_(4)},
                   win={-1: [None, None], 0: [('p', K_(5)), ('p', V_(3)), ('p', K_(6))], 1: [('p', K_(7)), None, None]}),
    }
    PL = PLANS[plan]
    kept = [x[1] for w in sorted(PL['win']) for x in PL['win'][w] if x and x[0] == 'p']
    assert len(kept) <= 4
    PARK = {}
    for i, u in enumerate(kept): PARK[u] = 64 + 16 * i
    for i, u in enumerate([u for u in PL['order'] if u not in kept]): PARK[u] = 128 + 16 * i
    class Loader:
        def __init__(self):
            self.vm = []; self.k = 0; self.ready = None
        def prep(self, u):
            so = (sT3, sRET)[self.k & 1]; self.k += 1
            kind, n = u[0], u[1]
            regs = len(u) > 2
            ops = []
            if kind == 'W':
                if n:
                    ops += [f's_add_u32 s{sLO}, s{sLO}, {1<<17}', f's_and_b32 s{sLO}, s{sLO}, {7<<17}']
                    if n % 8 == 0:
                        ops += [f's_add_u32 s{sHI}, s{sHI}, {8<<17}', f's_and_b32 s{sHI}, s{sHI}, {24<<17}', f's_add_u32 s{sHB}, s{sHI}, s{sWB}']
                ops.append(f's_add_u32 s{so}, s{sLO}, s{sHB}')
                m0 = f's_add_u32 m0, s{sLM}, {((n + 4) % 6)*T8}'
                S, vo, fl = SRD_WQ, lambda j: vDW + j, (u[2] if regs else wq_fl)
                regs = False
            elif kind == 'X':
                ops += [f's_add_u32 s{sT1}, s{sQ8}, {n*8}', f's_and_b32 s{sT1}, s{sT1}, 24', f's_lshl_b32 s{sT1}, s{sT1}, 5', f's_add_u32 s{so}, s{sT1}, s{sAX}']
                m0 = f's_add_u32 m0, s{sAMV}, {n*T8}'
                S, vo, fl = SRD_X, lambda j: vDX + j, ''
            else:
                ops.append(f's_xor_b32 s{so}, s{sAKV}, {n*T8}')
                if kind == 'K':
                    m0 = f's_add_u32 m0, s{sLM}, {(n % 6)*T8}'
                    S, vo, fl = SRD_K, lambda j: vKD4 + j, kv_fl
                else:
                    m0 = f's_add_u32 m0, s{sAMV}, {(n % 4)*T8}'
                    S, vo, fl = SRD_V, lambda j: vDV, kv_fl
            if regs:
                r = PARK[(kind, n)]
                lds = [f'buffer_load_dwordx4 v[{r+4*j}:{r+4*j+3}], v{vo(j)}, {srd(S)}, s{so} offen offset:{j*1024}{fl}' for j in range(4)]
                m0 = None
            else:
                lds = [f'buffer_load_dwordx4 v{vo(j)}, {srd(S)}, s{so} offen offset:{j*1024}{fl} lds' for j in range(4)]
            return ops, m0, lds
        def run(self, seq):
            us = [i for i, x in enumerate(seq) if not callable(x)]
            for i, x in enumerate(seq):
                if callable(x):
                    x(); continue
                if self.ready is None:
                    ops, m0, lds = self.prep(x)
                    for t in ops + ([m0] if m0 else []): a(t)
                else:
                    lds = self.ready
                self.ready = None
                if not self.vm and self.first: self.first()
                nx = [k for k in us if k > i]
                brk = nx and any(getattr(seq[k], 'brk', False) for k in range(i + 1, nx[0]))
                skip = nodma and x[0] == 'W' and x[1] >= 6
                if not skip: a(lds[0])
                m0 = None
                if nx and not brk:
                    ops, m0, self.ready = self.prep(seq[nx[0]])
                    for t in ops: a(t)
                if not skip:
                    for t in lds[1:]: a(t)
                    self.vm.append(x[:2])
                if m0: a(m0)
        def need(self, u):
            if u not in self.vm: return 0 if nodma else 1/0
            return 4 * (len(self.vm) - 1 - self.vm.index(u))
    def sel_srd():
        a(f'''
        s_cmp_eq_u32 s{sBLK}, 0
        s_waitcnt lgkmcnt(0)
        s_cselect_b32 s{SRD_WQ}, s22, s32
        s_cselect_b32 s{SRD_WQ+1}, s23, s33
        s_cselect_b32 s{SRD_X}, s16, s26
        s_cselect_b32 s{SRD_X+1}, s17, s27
        ''')
    LE, LL = Loader(), Loader()
    LE.first = LL.first = sel_srd
    a(f's_cmp_lg_u32 s{sROLE}, 0')
    a('s_cbranch_scc1 L_initL')
    LE.run([('W', 0, wqe_fl), ('X', 0), ('W', 1, wqe_fl)])
    a('s_branch L_setup')
    a.label('L_initL')
    a(f's_mov_b32 s{sROLE}, 2')
    LL.run([('X', 1), ('X', 2), ('X', 3)])

    a.label('L_setup')
    a(f'''
    s_mov_b32 s{SRD_K+2}, 0x2000000
    s_mov_b32 s{SRD_K+3}, 0x00020000
    s_mov_b32 s{SRD_V+2}, 0x2000000
    s_mov_b32 s{SRD_V+3}, 0x00020000
    s_lshl_b32 s{sT1}, s{sBLK}, 3
    s_lshl_b32 s{sID}, s{sBP}, 4
    s_or_b32 s{sID}, s{sID}, s{sT1}
    s_or_b32 s{sID}, s{sID}, s{sG}
    v_xor_b32 v{vKD4+1}, 64, v{vKD4}
    v_xor_b32 v{vKD4+2}, 0x80, v{vKD4}
    v_xor_b32 v{vKD4+3}, 0xc0, v{vKD4}
    v_add_u32 v{vPK}, s{sLM}, v{vLin}
    v_add_u32 v{vPV}, s{sAMV}, v{vLin}
    s_mov_b32 s{SRD_WO+2}, 0x400000
    s_mov_b32 s{SRD_WO+3}, 0x00020000
    s_mov_b32 s{SRD_WS+2}, 0x10000000
    s_mov_b32 s{SRD_WS+3}, 0x00020000
    s_mov_b32 s{sSC}, {fbits(128 ** -0.5 * 1.4426950408889634)}
    s_mov_b32 s{sSC+1}, s{sSC}
    s_mov_b32 s{sTHR}, {fbits(1024.0)}
    s_and_b32 s42, s{sW}, 3
    s_lshr_b32 s43, s{sW}, 2
    ''')
    sH, sB = 42, 43
    a(f'''
    v_lshrrev_b32 v42, 5, v{vL}
    v_and_b32 v43, 31, v{vL}
    v_bfe_u32 v44, v{vL}, 2, 2
    v_and_b32 v45, 1, v40
    v_lshlrev_b32 v45, 4, v45
    v_bfe_u32 v46, v{vL}, 1, 1
    v_lshl_add_u32 v45, v46, 3, v45
    v_and_b32 v46, 1, v{vL}
    ''')
    a(f'''
    v_lshl_add_u32 v47, v46, 7, v45
    v_lshl_add_u32 v47, v44, 5, v47
    v_lshl_add_u32 v47, v44, 10, v47
    s_lshl_b32 s{sT1}, s{sH}, 8
    v_add_u32 v47, s{sT1}, v47
    s_mov_b32 s{sT1}, {KB}
    v_mad_u32_u24 v{vAb}, v42, s{sT1}, v47
    v_xor_b32 v{vAb+1}, 32, v{vAb}
    v_xor_b32 v{vAb+2}, 64, v{vAb}
    v_xor_b32 v{vAb+3}, 0x60, v{vAb}
    ''')
    a(f'''
    v_xor_b32 v47, v42, v41
    v_lshlrev_b32 v47, 4, v47
    v_lshl_add_u32 v47, v43, 8, v47
    v_add_u32 v{vBb}, {VA}, v47
    ''')
    a(f'''
    v_lshlrev_b32 v47, 3, v42
    v_xor_b32 v47, v47, v41
    v_lshlrev_b32 v47, 4, v47
    v_lshl_add_u32 v47, v43, 8, v47
    s_mul_i32 s{sMK}, s{sB}, {KB}
    v_add_u32 v{vKC}, s{sMK}, v47
    ''')
    for s in range(1, 8):
        a(f'v_xor_b32 v{vKC+s}, {s*16}, v{vKC}')
    a(f'''
    v_lshl_add_u32 v47, v46, 5, v45
    v_lshl_add_u32 v47, v44, 6, v47
    v_lshl_add_u32 v47, v44, 8, v47
    v_lshl_add_u32 v47, v42, 10, v47
    s_lshl_b32 s{sMV}, s{sB}, 15
    s_add_u32 s{sMV}, s{sMV}, {VA}
    v_add_u32 v{vVC}, s{sMV}, v47
    v_xor_b32 v{vVC+1}, 64, v{vVC}
    v_xor_b32 v{vVC+2}, 0x80, v{vVC}
    v_xor_b32 v{vVC+3}, 0xc0, v{vVC}
    ''')
    a(f'''
    v_xor_b32 v47, v41, v40
    v_lshlrev_b32 v47, 4, v47
    v_lshl_add_u32 v47, v40, 8, v47
    s_and_b32 s{sT1}, s{sH}, 1
    s_lshl_b32 s{sT2}, s{sT1}, 7
    v_xor_b32 v{vDK}, s{sT2}, v47
    v_xor_b32 v{vDK+1}, 64, v{vDK}
    v_lshlrev_b32 v47, 2, v40
    v_xor_b32 v47, v41, v47
    v_lshlrev_b32 v47, 4, v47
    v_lshl_add_u32 v{vDV}, v40, 8, v47
    s_lshl_b32 s{sT2}, s{sT1}, 6
    v_xor_b32 v{vDO}, s{sT2}, v{vLin}
    v_xor_b32 v{vDO+1}, 32, v{vDO}
    ''')
    def rot_ops(r):
        if rot is None: return
        if rot == 'bp':
            a(f's_lshr_b32 s{sT1}, s{r}, 8'); a(f's_and_b32 s{sT1}, s{sT1}, {15<<13}')
        elif rot == 'b':
            a(f's_lshr_b32 s{sT1}, s{r}, 7'); a(f's_and_b32 s{sT1}, s{sT1}, {15<<13}')
        elif rot == 'g':
            a(f's_lshr_b32 s{sT1}, s{r}, 5'); a(f's_and_b32 s{sT1}, s{sT1}, {15<<13}')
        elif rot == 'h':
            a(f's_lshr_b32 s{sT1}, s{r}, 17'); a(f's_mul_i32 s{sT1}, s{sT1}, 0x9e3779b1'); a(f's_lshr_b32 s{sT1}, s{sT1}, 15'); a(f's_and_b32 s{sT1}, s{sT1}, {15<<13}')
        a(f's_or_b32 s{r}, s{r}, s{sT1}')
    rot_ops(sAKV)
    a(f'''
    s_lshl_b32 s{sT1}, s{sH}, 11
    s_add_u32 s{sMK}, s{sMK}, s{sT1}
    s_add_u32 s{sMV}, s{sMV}, s{sT1}
    s_lshl_b32 s{sKV}, s{sBP}, 1
    s_add_u32 s{sKV}, s{sKV}, s{sB}
    s_lshl_b32 s{sKV}, s{sKV}, 3
    s_add_u32 s{sKV}, s{sKV}, s{sG}
    s_lshl_b32 s{sKV}, s{sKV}, 17
    s_add_u32 s{sKV}, s{sKV}, s{sT1}
    ''')
    rot_ops(sKV)
    a(f'''
    s_lshl_b32 s{sWO}, s{sG}, 19
    s_lshl_b32 s{sT1}, s{sW}, 11
    s_add_u32 s{sWO}, s{sWO}, s{sT1}
    s_and_b32 s{sT1}, s{sH}, 1
    s_mul_i32 s{sT2}, s{sT1}, {KB}
    s_add_u32 s{sT2}, s{sT2}, {KA + 5*T8}
    s_lshl_b32 s{sT1}, s{sT1}, 15
    s_add_u32 s{sT1}, s{sT1}, {VA + 3*T8}
    s_cmp_lt_u32 s{sH}, 2
    s_cselect_b32 s{sT1}, s{sT2}, s{sT1}
    v_add_u32 v{vQX}, s{sT1}, v{vLin}
    s_cmp_eq_u32 s{sBLK}, 0
    s_waitcnt lgkmcnt(0)
    s_cselect_b32 s{SRD_K}, s18, s28
    s_cselect_b32 s{SRD_K+1}, s19, s29
    s_cselect_b32 s{SRD_V}, s20, s30
    s_cselect_b32 s{SRD_V+1}, s21, s31
    s_cselect_b32 s{SRD_WO}, s24, s34
    s_cselect_b32 s{SRD_WO+1}, s25, s35
    s_mov_b32 s{SRD_WS}, s40
    s_mov_b32 s{SRD_WS+1}, s41
    s_cmp_lt_u32 s{sW}, 4
    s_cbranch_scc1 L_cons
    s_cmp_lg_u32 s{sROLE}, 0
    s_cbranch_scc1 L_ldL
    ''')
    def park_write(u):
        r = PARK[u]
        for j in range(4):
            if u[0] == 'K': a(f'ds_write_b128 v{vPK}, v[{r+4*j}:{r+4*j+3}] offset:{(u[1] % 6)*T8 + j*1024}')
            else: a(f'ds_write_b128 v{vPV}, v[{r+4*j}:{r+4*j+3}] offset:{(u[1] % 4)*T8 + j*1024}')
    QS = (1, 3, 7, 15, 23, 31)
    def bar(L, n):
        def f():
            if n < 31:
                w = L.need(('W', n + 1))
                if (n + 1) % 8 == 0: w = min(w, L.need(('X', (n + 1) // 8)))
                a(f's_waitcnt vmcnt({min(w, 63)})')
            a('s_barrier')
            if n == -1: stamp(1)
            if qst and n in QS: stamp(2 + QS.index(n), True)
        return f
    def wo_flavour():
        for j in range(1, 4):
            a(f'v_subrev_u32 v{vDW+j}, {j*7168}, v{vDW+j}')
        a(f'''
        s_and_b32 s{sT1}, s{sW}, 3
        s_lshl_b32 s{sT1}, s{sT1}, 12
        s_lshl_b32 s{sWB}, s{sG}, 19
        s_add_u32 s{sWB}, s{sWB}, s{sT1}
        ''')
    seq = [('W', n) for n in range(2, QLA - 1)]
    tailu = [('K', 0), ('K', 1), ('V', 0)]
    for n in range(-1, 32):
        seq.append(bar(LE, n))
        if n % 8 == xat and n < 24: seq.append(('X', n // 8 + 1))
        if n + QLA <= 31: seq.append(('W', n + QLA))
        elif tailu and n >= 26: seq.append(tailu.pop(0))
        if n == 30: seq.append(wo_flavour)
    assert not tailu
    seq.append(('K', 2))
    LE.run(seq)
    a(f's_waitcnt vmcnt({LE.need(("K", 0))})')
    a('s_branch L_getq')
    a.label('L_ldL')
    seq = [('X', 0), ('W', 0, wq0_fl), ('W', 1, wq0_fl)]
    seq += [u + ('r',) for u in PL['order']]
    seq += [('W', n) for n in range(2, QLA - 1)]
    for n in range(-1, 32):
        seq.append(bar(LL, n))
        if n + QLA <= 31: seq.append(('W', n + QLA))
        if n in PL['tail']:
            u = PL['tail'][n]
            assert n >= (26 + u[1] if u[0] == 'K' else 7 + 8 * u[1])
            seq.append(u)
        if n in (7, 15, 23) and V_(n // 8) in PARK: seq.append(lambda n=n: park_write(('V', n // 8)))
        if 26 <= n <= 30 and K_(n - 26) in PARK: seq.append(lambda n=n: park_write(('K', n - 26)))
        if n == 30: seq.append(wo_flavour)
    LL.run(seq)
    a.label('L_getq')
    stamp(2)
    if lprio is not None: a('s_setprio 0')
    a('s_waitcnt lgkmcnt(0)')
    a('s_barrier')
    for s in range(8):
        a(f'ds_read_b128 v[{vQ+4*s}:{vQ+4*s+3}], v{vQX} offset:{s*1024}')
    a('s_branch L_attn')

    q = Q(a)
    a.label('L_cons')
    a(f'''
    s_lshl_b32 s{sSUB}, s{sSUB}, 5
    s_mov_b32 s{sPH}, 0
    ''')
    def rdA(F, t):
        if noread: return
        for e in range(2):
            q.issue(('A', t), f'ds_read_b64_tr_b16 v[{F+4*t+2*e}:{F+4*t+2*e+1}], v{vA+t} offset:{e*4096}')
    def rdB(F, u):
        if noread: return
        q.issue(('B', u), f'ds_read_b128 v[{F+16+4*u}:{F+16+4*u+3}], v{vB} offset:{u*32768}')
    def pm(F, t, u, zero=False):
        if nomfma: return
        d = acc(t, u)
        c = '0' if zero else f'v[{d}:{d+15}]'
        a(f'v_mfma_f32_32x32x16_bf16 v[{d}:{d+15}], v[{F+4*t}:{F+4*t+3}], v[{F+16+4*u}:{F+16+4*u+3}], {c}')
    a.label('L_phase')
    a(f'''
    s_mov_b32 s{sC}, 0
    s_mov_b32 s{sPOS}, {4*T8}
    v_xor_b32 v{vB}, s{sSUB}, v{vBb}
    ''')
    for t in range(4): a(f'v_add_u32 v{vA+t}, s{sPOS}, v{vAb+t}')
    a('s_waitcnt vmcnt(0) lgkmcnt(0)')
    a('s_barrier')
    if stamps:
        a(f's_cmp_lg_u32 s{sPH}, 0')
        a('s_cbranch_scc1 L_st5')
        stamp(1)
        a('s_branch L_st1')
        a.label('L_st5')
        stamp(5)
        a.label('L_st1')
        a('s_waitcnt lgkmcnt(0)')
    rdB(F0, 1); rdA(F0, 0); rdB(F0, 0); rdA(F0, 1); rdA(F0, 2); rdA(F0, 3)
    def first_half(F, zero):
        q.wait(('A', 0)); pm(F, 0, 1, zero)
        a(f'''
        s_add_u32 s{sC}, s{sC}, 32
        s_add_u32 s{sT1}, s{sC}, s{sSUB}
        s_and_b32 s{sT1}, s{sT1}, 0xe0
        s_lshl_b32 s{sT2}, s{sC}, 5
        s_and_b32 s{sT2}, s{sT2}, 0x6000
        s_or_b32 s{sT1}, s{sT1}, s{sT2}
        ''')
        q.wait(('B', 0)); pm(F, 0, 0, zero)
        a(f'''
        s_add_u32 s{sPOS}, s{sPOS}, {T8}
        s_cmp_eq_u32 s{sPOS}, {6*T8}
        s_cselect_b32 s{sPOS}, 0, s{sPOS}
        v_xor_b32 v{vB}, s{sT1}, v{vBb}
        ''')
        q.wait(('A', 1)); pm(F, 1, 1, zero)
        for t in range(4): a(f'v_add_u32 v{vA+t}, s{sPOS}, v{vAb+t}')
        a(f's_cmp_eq_u32 s{sC}, 1024')
        pm(F, 1, 0, zero)
        a('s_waitcnt lgkmcnt(0)')
        q.clear()
        a('s_barrier')
    def second_half(F, Fn, zero):
        pm(F, 2, 1, zero)
        rdB(Fn, 1); rdA(Fn, 0); rdB(Fn, 0)
        pm(F, 3, 1, zero)
        rdA(Fn, 1); rdA(Fn, 2)
        pm(F, 2, 0, zero)
        rdA(Fn, 3)
        pm(F, 3, 0, zero)
    first_half(F0, True); second_half(F0, F1, True)
    a.label('L_cloop')
    saved = list(q.q)
    first_half(F1, False)
    a('s_cbranch_scc1 L_ctail')
    second_half(F1, F0, False)
    first_half(F0, False); second_half(F0, F1, False)
    assert q.q == saved
    a('s_branch L_cloop')
    q.clear()
    a.label('L_ctail')
    pm(F1, 2, 1)
    a(f's_cmp_lg_u32 s{sPH}, 0')
    a('s_cbranch_scc1 L_otail')
    def scale_pack(d, st):
        for i in range(0, 16, 2):
            if pk:
                a(f'v_pk_mul_f32 v[{d+i}:{d+i+1}], v[{d+i}:{d+i+1}], s[{sSC}:{sSC+1}]')
            else:
                a(f'v_mul_f32 v{d+i}, s{sSC}, v{d+i}')
                a(f'v_mul_f32 v{d+i+1}, s{sSC}, v{d+i+1}')
        for i in range(8):
            a(f'v_cvt_pk_bf16_f32 v{st+i}, v{d+2*i}, v{d+2*i+1}')
    QST = [64, 72, 80, 112]
    def qx(t):
        scale_pack(acc(t, 1), QST[t])
        for c2 in range(2):
            r = QST[t] + 4 * c2
            a(f'ds_write_b128 v{vQX}, v[{r}:{r+3}] offset:{(2*t+c2)*1024}')
    pm(F1, 3, 1)
    qx(0)
    pm(F1, 2, 0)
    qx(1)
    pm(F1, 3, 0)
    qx(2); qx(3)
    stamp(2)
    a('s_waitcnt lgkmcnt(0)')
    a('s_barrier')
    for t in range(4):
        scale_pack(acc(t, 0), vQ + 8 * t)
    a(f'''
    s_mov_b32 s{sPH}, 1
    s_lshr_b32 s{sSUB}, s{sSUB}, 5
    ''')

    a.label('L_attn')
    if prio is not None:
        a(f's_cmp_lt_u32 s{sW}, 4')
        a('s_cbranch_scc1 L_noprio')
        a(f's_setprio {prio}')
        a.label('L_noprio')
    jobs = []
    for r in range(-1, 17):
        if r + 1 <= 15:
            for s in range(8): jobs.append((r, 'K', r + 1, s))
        if 1 <= r:
            order = [(c, dt) for c in range(2) for dt in range(4)] if r < 16 else [(c, dt) for dt in range(4) for c in range(2)]
            for c, dt in order: jobs.append((r, 'V', r - 1, (c, dt)))
    vm = [('K', 0)] * 4 + [('K', 1)] * 4 + [('V', 0)] * 4 + [('K', 2)] * 4
    state = dict(rd=0, pub=-1)
    def rd(j):
        r, kind, t, ix = jobs[j]
        F = vF + (j & 7) * 4
        if noard and 2 <= r <= 15: return
        if kind == 'K':
            q.issue(j, f'ds_read_b128 v[{F}:{F+3}], v{vKC+ix} offset:{(t % 6)*T8}')
        else:
            c, dt = ix
            for e in range(2):
                q.issue(j, f'ds_read_b64_tr_b16 v[{F+2*e}:{F+2*e+1}], v{vVC+dt} offset:{(t % 4)*T8 + (16*c+8*e)*256}')
    def reads_upto(j, la=LA):
        while state['rd'] < len(jobs) and state['rd'] <= j + la and jobs[state['rd']][0] <= state['pub']:
            n = 2 if jobs[state['rd']][1] == 'V' else 1
            if len(q.q) + n > 15: break
            rd(state['rd']); state['rd'] += 1
    def mm(j):
        r, kind, t, ix = jobs[j]
        F = vF + (j & 7) * 4
        q.wait(j)
        if kind == 'K':
            d = vS + (t & 1) * 16
            if ix == 0: c = '0' if t == 0 else f'v[{vNM}:{vNM+15}]'
            else: c = f'v[{d}:{d+15}]'
            a(f'v_mfma_f32_32x32x16_bf16 v[{d}:{d+15}], v[{F}:{F+3}], v[{vQ+4*ix}:{vQ+4*ix+3}], {c}')
        else:
            c, dt = ix
            d = vO + dt * 16
            p = vP + (t & 1) * 8 + c * 4
            cc = '0' if (t == 0 and c == 0) else f'v[{d}:{d+15}]'
            a(f'v_mfma_f32_32x32x16_bf16 v[{d}:{d+15}], v[{F}:{F+3}], v[{p}:{p+3}], {cc}')
    def fin(par, i, p0):
        r = []
        if i == 2:
            if pk: r.append(f'v_pk_add_f32 v[{vTS}:{vTS+1}], v[{vE}:{vE+1}], v[{p0}:{p0+1}]')
            else: r += [f'v_add_f32 v{vTS}, v{vE}, v{p0}', f'v_add_f32 v{vTS+1}, v{vE+1}, v{p0+1}']
        elif i > 2:
            if pk: r.append(f'v_pk_add_f32 v[{vTS}:{vTS+1}], v[{vTS}:{vTS+1}], v[{p0}:{p0+1}]')
            else: r += [f'v_add_f32 v{vTS}, v{vTS}, v{p0}', f'v_add_f32 v{vTS+1}, v{vTS+1}, v{p0+1}']
        r.append(f'v_cvt_pk_bf16_f32 v{vP+par*8+i//2}, v{p0}, v{p0+1}')
        return r
    def softmax_ops(par, addm=False):
        S = vS + par * 16
        ops = []
        for i in range(0, 16, 2):
            e0 = vE + (i & 7)
            if addm:
                ops.append(f'v_add_f32 v{S+i}, v{S+i}, v{vNM}')
                ops.append(f'v_add_f32 v{S+i+1}, v{S+i+1}, v{vNM}')
            ops.append(f'v_exp_f32 v{e0}, v{S+i}')
            ops.append(f'v_exp_f32 v{e0+1}, v{S+i+1}')
            if i >= 2:
                ops += fin(par, i - 2, vE + ((i - 2) & 7))
        ops += fin(par, 14, vE + 6)
        ops.append(f'v_add_f32 v{vTS}, v{vTS}, v{vTS+1}')
        return ops
    def max_ops(S):
        r = [f'v_max3_f32 v{vT}, v{S}, v{S+1}, v{S+2}', f'v_max3_f32 v{vT+1}, v{S+3}, v{S+4}, v{S+5}']
        for i in (6, 10):
            r.append(f'v_max3_f32 v{vT}, v{vT}, v{S+i}, v{S+i+1}')
            r.append(f'v_max3_f32 v{vT+1}, v{vT+1}, v{S+i+2}, v{S+i+3}')
        r.append(f'v_max3_f32 v{vT}, v{vT}, v{S+14}, v{S+15}')
        r.append(f'v_max_f32 v{vT}, v{vT}, v{vT+1}')
        r.append(f'v_mov_b32 v{vT+1}, v{vT}')
        r.append(f'v_permlane32_swap_b32 v{vT}, v{vT+1}')
        return r
    EW = {-1: [('K', 3), ('V', 1)], 0: [('K', 4), ('V', 2), ('K', 5)], 1: [('V', 3), ('K', 6), ('K', 7)]}
    LW = PL['win']
    vmL = [PL['tail'][n] for n in sorted(PL['tail']) for _ in range(4)]
    alts = []
    def kv_group(kind, t):
        if kind == 'V':
            return ([f's_add_u32 m0, s{sMV}, {(t % 4)*T8}', f's_xor_b32 s{sT3}, s{sKV}, {t*T8}'],
                    [f'buffer_load_dwordx4 v{vDV}, {srd(SRD_V)}, s{sT3} offen offset:{j*1024}{kv_fl} lds' for j in range(2)], ('V', t))
        return ([f's_add_u32 m0, s{sMK}, {(t % 6)*T8}', f's_xor_b32 s{sT3}, s{sKV}, {t*T8}'],
                [f'buffer_load_dwordx4 v{vDK+j}, {srd(SRD_K)}, s{sT3} offen offset:{j*1024}{kv_fl} lds' for j in range(2)], ('K', t))
    def issue_groups(w):
        flat = []
        if w in EW:
            for k, (e, l) in enumerate(zip(EW[w], LW[w])):
                pre, lds, tag = kv_group(*e)
                nm = f'{w+1}_{k}'
                flat.append(([f's_cmp_lg_u32 s{sROLE}, 0', f's_cbranch_scc1 L_{"alt" if l else "ret"}{nm}'] + pre + lds + [f'L_ret{nm}:'], [tag, tag], [l[1], l[1]] if l and l[0] == 'd' else []))
                flat.append(([], [], []))
                if l: alts.append((nm, l))
            return flat
        g = []
        if w + 2 <= 15: g.append(kv_group('V', w + 2))
        if w + 6 <= 15: g.append(kv_group('K', w + 6))
        if nokv: g = []
        for n in dict(wow).get(w, ()):
            assert w >= 10 + n
            g.append((kslot_ops(n, sT3, 14, sWO) + [f's_add_u32 m0, s{sMK}, {((4 + n) % 6)*T8}'],
                      [f'buffer_load_dwordx4 v{vDO+j}, {srd(SRD_WO)}, s{sT3} offen offset:{j*1024}{wo_fl} lds' for j in range(2)], ('W', n)))
        for pre, lds, tag in g:
            flat.append((pre + [lds[0]], [tag], [tag])); flat.append(([lds[1]], [tag], [tag]))
        return flat
    def emit_pend(pend, n=1):
        while pend and n:
            ins, tags, tagsL = pend.pop(0)
            for t in ins:
                if t.endswith(':'): a.label(t[:-1])
                else: a(t)
            vm.extend(tags); vmL.extend(tagsL)
            n -= 1
    def barrier(r):
        need = [('K', r + 1), ('V', r - 1)]
        def cnt(v):
            idx = [i for i, t in enumerate(v) if t in need]
            return len(v) - 1 - max(idx) if idx else 63
        n, nl = cnt(vm), cnt(vmL)
        if nl < n and len(vm) > nl or nl > n and len(vmL) > n:
            a(f's_cmp_{"eq" if nl < n else "lg"}_u32 s{sROLE}, 0')
            a(f's_cbranch_scc1 L_bw{r}')
            a(f's_waitcnt vmcnt({min(n, nl)})')
            a.label(f'L_bw{r}')
            del vm[:max(0, len(vm) - n)]; del vmL[:max(0, len(vmL) - nl)]
            n = max(n, nl)
        else:
            n = min(n, nl)
            del vm[:max(0, len(vm) - n)]; del vmL[:max(0, len(vmL) - n)]
        a(f's_waitcnt vmcnt({n}) lgkmcnt(0)')
        q.clear()
        a('s_barrier')
        state['pub'] = r

    state['pub'] = -1
    reads_upto(-1, 8)
    pend = issue_groups(-1)
    j = 0
    for r in range(-1, 17):
        rj = [k for k in range(len(jobs)) if jobs[k][0] == r]
        n = len(rj)
        if r == -1: chunks = [[] for _ in rj]
        elif r == 0: chunks = spread(softmax_ops(0, True), n)
        elif r == 1: chunks = [[]] + spread(softmax_ops(1), n - 1)
        elif r <= 15 and not nosm: chunks = spread(softmax_ops(r & 1), n)
        else: chunks = [[] for _ in rj]
        if r == 15:
            extra = [f'v_lshrrev_b32 v42, 5, v{vL}', f'v_and_b32 v43, 15, v{vL}', f'v_lshlrev_b32 v42, 1, v42',
                     f'v_xor_b32 v42, v42, v43', f'v_lshlrev_b32 v42, 4, v42', f'v_and_b32 v43, 31, v{vL}',
                     f'v_lshl_add_u32 v42, v43, 8, v42',
                     f's_lshr_b32 s{sT1}, s{sQ8}, 3', f's_sub_u32 s{sT1}, s{sH}, s{sT1}', f's_and_b32 s{sT1}, s{sT1}, 3',
                     f's_lshl_b32 s{sT1}, s{sT1}, 13', f's_lshl_b32 s{sT2}, s{sB}, 15', f's_add_u32 s{sT1}, s{sT1}, s{sT2}',
                     f's_add_u32 s{sRET+0}, s{sT1}, {VA}', f'v_add_u32 v{vOW}, s{sRET}, v42']
            extra += [f'v_xor_b32 v{vOW+k}, {(4*(k>>1)+(k&1))*16}, v{vOW}' for k in range(1, 8)]
            late15 = extra
        for i, k in enumerate(rj):
            mm(k)
            if r == 16:
                c, dt = jobs[k][3]
                reads_upto(k)
                emit_pend(pend, 1 if i < 2 else -1)
                if i == 3:
                    a('s_waitcnt lgkmcnt(0)')
                    q.clear()
                    a('s_barrier')
                if c == 1 and dt >= 1:
                    fin_dt(dt - 1)
                continue
            reads_upto(k)
            emit_pend(pend)
            for t in chunks[i]: a(t)
            if i == n - 5:
                emit_pend(pend, -1)
                assert state['rd'] > rj[-1]
                if r == -1: stamp(3)
                if r == 15: stamp(4)
                barrier(r + 1)
                if ast and r + 1 in ast: stamp(1 + ast.index(r + 1), True)
                reads_upto(k)
                pend = issue_groups(r + 1)
        if r == -1:
            for t in max_ops(vS): a(t)
            a(f'v_max_f32 v{vT}, v{vT}, v{vT+1}')
            a(f'v_sub_f32 v{vNM}, 0, v{vT}')
            for i in range(1, 16): a(f'v_mov_b32 v{vNM+i}, v{vNM}')
        elif r == 0:
            a(f'v_mov_b32 v{vSUM}, v{vTS}')
        elif r <= 15:
            a(f's_mov_b32 s{sRET}, {r}')
            a(f'v_cmp_nge_f32 vcc, s{sTHR}, v{vTS}')
            a(f's_cbranch_vccnz L_slow{r & 1}')
            a.label(f'L_back{r}')
            a(f'v_add_f32 v{vSUM}, v{vSUM}, v{vTS}')
        if r == 15:
            a(f'v_mov_b32 v{vT}, v{vSUM}')
            for t in late15[:2]: a(t)
            a(f'v_permlane32_swap_b32 v{vT}, v{vSUM}')
            for t in late15[2:4]: a(t)
            a(f'v_add_f32 v{vSUM}, v{vSUM}, v{vT}')
            a(f'v_rcp_f32 v{vTS}, v{vSUM}')
            rest15 = late15[4:] + [f'v_mov_b32 v{vTS+1}, v{vTS}']
            def fin_dt(dt):
                if dt == 0:
                    for t in rest15: a(t)
                d = vO + dt * 16
                st = vS + dt * 8
                for i in range(0, 16, 2):
                    if pk: a(f'v_pk_mul_f32 v[{d+i}:{d+i+1}], v[{d+i}:{d+i+1}], v[{vTS}:{vTS+1}]')
                    else:
                        a(f'v_mul_f32 v{d+i}, v{vTS}, v{d+i}')
                        a(f'v_mul_f32 v{d+i+1}, v{vTS}, v{d+i+1}')
                for i in range(8):
                    a(f'v_cvt_pk_bf16_f32 v{st+i}, v{d+2*i}, v{d+2*i+1}')
                for c2 in range(2):
                    a(f'ds_write_b128 v{vOW+2*dt+c2}, v[{st+4*c2}:{st+4*c2+3}]')
    fin_dt(3)
    if prio is not None: a('s_setprio 0')
    a(f'''
    s_lshl_b32 s{sT1}, s{sSUB}, 5
    s_cmp_lt_u32 s{sW}, 4
    s_cselect_b32 s{sSUB}, s{sT1}, s{sSUB}
    s_cbranch_scc1 L_phase
    ''')
    if lprio is not None: a(f's_setprio {lprio}')
    a(f's_mov_b32 s{sC}, 6')
    a(f's_add_u32 s{sPOS}, s{sLM}, {4*T8}')
    a(f's_add_u32 s{sBEG}, s{sLM}, {6*T8}')
    for t in kslot_ops(6, sRET, 14, sWB): a(t)
    a('s_waitcnt vmcnt(0) lgkmcnt(0)')
    a('s_barrier')
    stamp(5); stamp(6)
    a.label('L_wo')
    a(f'''
    s_mov_b32 m0, s{sPOS}
    s_mov_b32 s{sT3}, s{sRET}
    s_waitcnt vmcnt(16)
    s_barrier
    ''')
    wl = [f'buffer_load_dwordx4 v{vDW+j}, {srd(SRD_WO)}, s{sT3} offen offset:{j*1024}{wo_fl} lds' for j in range(4)]
    if not nodma: a(wl[0])
    a(f'''
    s_add_u32 s{sPOS}, s{sPOS}, {T8}
    s_cmp_eq_u32 s{sPOS}, s{sBEG}
    s_cselect_b32 s{sPOS}, s{sLM}, s{sPOS}
    s_add_u32 s{sC}, s{sC}, 1
    ''')
    if not nodma: a(wl[1])
    for t in kslot_ops(f's{sC}', sRET, 14, sWB): a(t)
    a(f's_cmp_lt_u32 s{sC}, 32')
    if not nodma: a(wl[2]); a(wl[3])
    a('s_cbranch_scc1 L_wo')
    for n in (16, 12, 8, 4, 0):
        a(f's_waitcnt vmcnt({n})')
        a('s_barrier')
    a('s_branch L_fin')

    a.label('L_otail')
    stamp(6)
    a(f'''
    s_lshl_b32 s{sT1}, s2, 16
    s_lshl_b32 s{sT2}, s{sW}, 14
    s_add_u32 s16, s{sT1}, s{sT2}
    s_add_u32 s17, s16, 4096
    s_add_u32 s18, s16, 8192
    s_add_u32 s19, s16, 12288
    ''')
    def st(t, u):
        d = acc(t, u)
        for i in range(8):
            a(f'v_cvt_pk_bf16_f32 v{d+i}, v{d+2*i}, v{d+2*i+1}')
        for c2 in range(2):
            a(f'buffer_store_dwordx4 v[{d+4*c2}:{d+4*c2+3}], v{vLin}, {srd(SRD_WS)}, s{16+2*u+(t>>1)} offen offset:{(t&1)*2048+c2*1024}{st_fl}')
    pm(F1, 3, 1)
    st(0, 1)
    pm(F1, 2, 0)
    st(0, 0)
    pm(F1, 3, 0)
    st(1, 1); st(1, 0); st(2, 1); st(3, 1); st(2, 0); st(3, 0)
    a.label('L_fin')
    if stamps:
        a('s_waitcnt vmcnt(0)')
        stamp(7)
        a('s_waitcnt lgkmcnt(0)')
        for k in range(8):
            a(f'v_mov_b32 v{48+k}, s{STAMP0+2*k}')
        a(f'''
        s_lshl_b32 s{sT1}, s2, 3
        s_add_u32 s{sT1}, s{sT1}, s{sW}
        s_lshl_b32 s{sT1}, s{sT1}, 5
        s_add_u32 s{sT1}, s{sT1}, 0x8000000
        v_mov_b32 v41, 0
        v_cmp_eq_u32 vcc, 0, v{vL}
        s_and_saveexec_b64 s[42:43], vcc
        buffer_store_dwordx4 v[48:51], v41, {srd(SRD_WS)}, s{sT1} offen
        buffer_store_dwordx4 v[52:55], v41, {srd(SRD_WS)}, s{sT1} offen offset:16
        ''')
    a.label('L_exit')
    a('s_endpgm')

    for nm, (kind, u) in alts:
        a.label(f'L_alt{nm}')
        if kind == 'p':
            a(f's_cmp_eq_u32 s{sROLE}, 1')
            a(f's_cbranch_scc1 L_ret{nm}')
            park_write(u)
        else:
            pre, lds, tag = kv_group(*u)
            for t in pre + lds: a(t)
        a(f's_branch L_ret{nm}')

    for par in range(2):
        S = vS + par * 16
        a.label(f'L_slow{par}')
        a('s_nop 7')
        a('s_nop 7')
        for t in max_ops(S): a(t)
        a(f'v_max3_f32 v{vT}, v{vT}, v{vT+1}, 0')
        a(f'v_exp_f32 v{vT+1}, -v{vT}')
        for i in range(32):
            a(f'v_sub_f32 v{vS+i}, v{vS+i}, v{vT}')
        for i in range(16):
            a(f'v_sub_f32 v{vNM+i}, v{vNM+i}, v{vT}')
        for i in range(64):
            a(f'v_mul_f32 v{vO+i}, v{vT+1}, v{vO+i}')
        a(f'v_mul_f32 v{vSUM}, v{vT+1}, v{vSUM}')
        for t in softmax_ops(par): a(t)
        rs = [r for r in range(1, 16) if (r & 1) == par]
        for r in rs[:-1]:
            a(f's_cmp_eq_u32 s{sRET}, {r}')
            a(f's_cbranch_scc1 L_back{r}')
        a(f's_branch L_back{rs[-1]}')

    kernel_begin(a, RED)
    a(f'''
    s_cmp_ge_u32 s2, 512
    s_cbranch_scc1 L_rexit
    s_load_dwordx2 s[4:5], s[0:1], 80
    s_load_dwordx2 s[8:9], s[0:1], 96
    v_and_b32 v1, 7, v0
    v_bfe_u32 v2, v0, 3, 3
    v_bfe_u32 v3, v0, 6, 1
    v_lshrrev_b32 v6, 7, v0
    v_lshl_add_u32 v2, v6, 3, v2
    v_lshlrev_b32 v4, 10, v1
    v_lshl_add_u32 v4, v3, 9, v4
    v_lshl_add_u32 v4, v2, 4, v4
    v_lshlrev_b32 v5, 11, v2
    v_lshl_add_u32 v5, v3, 7, v5
    v_lshl_add_u32 v5, v1, 4, v5
    s_lshr_b32 s12, s2, 4
    s_lshl_b32 s14, s12, 19
    s_bfe_u32 s13, s2, 0x30001
    s_lshl_b32 s15, s13, 13
    s_add_u32 s14, s14, s15
    s_and_b32 s17, s2, 1
    s_lshl_b32 s15, s17, 8
    s_add_u32 s14, s14, s15
    s_lshr_b32 s16, s12, 1
    s_lshl_b32 s16, s16, 17
    s_and_b32 s15, s2, 3
    s_lshl_b32 s15, s15, 15
    s_add_u32 s16, s16, s15
    s_and_b32 s15, s12, 1
    s_lshl_b32 s15, s15, 10
    s_add_u32 s16, s16, s15
    s_bfe_u32 s15, s2, 0x20002
    s_lshl_b32 s15, s15, 8
    s_add_u32 s16, s16, s15
    s_mov_b32 s6, 0x200000
    s_mov_b32 s7, 0x00020000
    s_mov_b32 s10, 0x10000000
    s_mov_b32 s11, 0x00020000
    s_mov_b32 s18, 0xffff0000
    s_waitcnt lgkmcnt(0)
    ''')
    for g in range(8):
        a(f'buffer_load_dwordx4 v[{8+4*g}:{11+4*g}], v4, s[8:11], s14 offen')
        if g < 7: a('s_add_u32 s14, s14, 65536')
    for g in range(8):
        a(f's_waitcnt vmcnt({7-g})')
        for i in range(4):
            r = 8 + 4 * g + i
            if g == 0:
                a(f'v_lshlrev_b32 v{40+2*i}, 16, v{r}')
                a(f'v_and_b32 v{41+2*i}, s18, v{r}')
            else:
                a(f'v_lshlrev_b32 v6, 16, v{r}')
                a(f'v_and_b32 v7, s18, v{r}')
                a(f'v_add_f32 v{40+2*i}, v{40+2*i}, v6')
                a(f'v_add_f32 v{41+2*i}, v{41+2*i}, v7')
    for i in range(4):
        a(f'v_cvt_pk_bf16_f32 v{48+i}, v{40+2*i}, v{41+2*i}')
    a('buffer_store_dwordx4 v[48:51], v5, s[4:7], s16 offen')
    a.label('L_rexit')
    a('s_endpgm')

    lines, n = hz.fix(a.lines, verbose='-v' in sys.argv)
    print('hazard nops inserted (states):', n)
    body = '\n'.join(lines) + '\n'
    return file_text([(NAME, 256, 512, 163840), (RED, 512, 256, 0)], body,
                     [descriptor(NAME, 256, 256), descriptor(RED, 56, 56, 24)])

if __name__ == '__main__':
    open('k3.s', 'w').write(gen(stamps=False))
    A = (0, 3, 6, 9, 12, 14, 16)
    V = {'s': {}, 'c': dict(cyc=True), 'b': dict(both=True), 'a': dict(ast=A)}
    for r in ('bp', 'b', 'g', 'h'): V['a_' + r] = dict(ast=A, rot=r)
    V['s_cb'] = dict(clsbp=True); V['s_cbh'] = dict(clsbp=True, rot='h'); V['s_h'] = dict(rot='h')
    for k, p in V.items():
        open(f'k3{k}.s', 'w').write(gen(stamps=True, **p))
```

```python
import sys, struct
from asmlib import *
import hz

BASE = 'concat_heads__gqa_block_cached__gqa_block_cached__near_ridge'
NAME = BASE + '_kernel'
RED = 'gqa_reduce_kernel'

def fbits(x):
    return '0x%08x' % struct.unpack('<I', struct.pack('<f', x))[0]

KA, KB, VA, VB = 0, 49152, 98304, 131072
T8 = 8192

sW, sG, sIDX, sBLK, sBP = 3, 4, 5, 6, 7
sC, sSUB, sROLE, sPOS, sBEG, sPH = 8, 9, 10, 11, 12, 13
sT1, sT2 = 14, 15
SRD_K, SRD_V, SRD_WQ, SRD_WO, SRD_WS, SRD_X = 44, 48, 52, 56, 60, 64
sKV, sMK, sMV, sTHR, sRET, sWO, sQ8, sT3 = 68, 69, 70, 71, 72, 73, 74, 75
sSC = 76
sWB, sLM = 78, 79
sAKV, sAX, sLO, sAMV = 96, 97, 98, 99
sHI, sHB = 100, 101
sID = 2
STAMP0 = 80

vL = 1
vAb, vA, vBb, vB = 2, 6, 10, 11
vKC, vVC, vDK, vDV, vDO = 12, 20, 24, 26, 27
vSUM, vTS, vE, vT = 29, 30, 32, 40
vQX, vLin, vDW, vKD4, vDX, vPK, vPV = 48, 49, 50, 54, 58, 62, 63
vOW = 12
F0, F1 = 64, 88
vO, vS, vQ, vNM, vP, vF = 64, 128, 160, 192, 208, 224
def acc(t, u): return (128 if u == 1 else 192) + 16 * t

class Q:
    def __init__(self, a):
        self.a = a; self.q = []
    def issue(self, tag, text):
        self.a(text); self.q.append(tag)
    def wait(self, tag):
        idx = [i for i, t in enumerate(self.q) if t == tag]
        if not idx:
            return
        n = len(self.q) - 1 - idx[-1]
        assert n <= 15, n
        self.a(f's_waitcnt lgkmcnt({n})')
        self.q = self.q[idx[-1] + 1:]
    def clear(self):
        self.q = []

def spread(ops, n):
    out = []; k = 0
    for i in range(n):
        e = (len(ops) * (i + 1)) // n
        out.append(ops[k:e]); k = e
    return out

def srd(b): return f's[{b}:{b+3}]'

def gen(stamps=False, pk=False, wq_fl='', wq0_fl='', wqe_fl=' nt', wo_fl='', wo0_fl=None, wo0_n=2, kv_fl=' nt', st_fl=' sc1', LA=7, prio=None, lprio=None, cyc=False, both=False, ast=None, nodma=False, nomfma=False, noread=False, qst=False,
        QLA=5, xat=3, allE=False, allL=False, inred=False, psleep=0, rst=False, hint=8192, clrw=16, nochk=False, xexit=False, noclr=False, lateA=False, csleep=8, xm=0, bst=False, xr=False, pf=False, lc=False, pw=None, pwfl='', pself=False, pbo=False, fl=False, flat_=False, pd=0, eth=None, lk=6, eb=0, wqt=0, kvt=None, wot=0, wop=None, lkm=None, ekm=None, kfirst=False, plan='p12', rot=None, clsbp=False, tlb=0, nokv=False, nosm=False, noard=False, wow=((13, (0,)), (14, (1,)), (15, (2,)), (16, (3, 4, 5)))):
    a = Asm()
    if fl: inred = xr = pf = lc = True
    if lkm or ekm: assert lk != 6
    def stamp(k, force=False):
        if stamps and both:
            c = {0: 7, 3: 1, 4: 2, 6: 5}.get(k)
            if c is not None:
                a(f's_memrealtime s[{STAMP0+2*k}:{STAMP0+2*k+1}]')
                a(f's_memtime s[{STAMP0+2*c}:{STAMP0+2*c+1}]')
            return
        if ast and not force and k != 0: return
        if stamps and (force or not qst or k in (0, 1)):
            a(f's_mem{"" if cyc else "real"}time s[{STAMP0+2*k}:{STAMP0+2*k+1}]')
    kernel_begin(a, NAME)
    a(f'''
    s_cmp_ge_u32 s2, 256
    s_cbranch_scc1 L_exit
    s_load_dwordx16 s[16:31], s[0:1], 0
    s_load_dwordx8 s[32:39], s[0:1], 64
    s_load_dwordx2 s[40:41], s[0:1], 96
    ''')
    stamp(0)
    a(f'''
    v_lshrrev_b32 v2, 6, v0
    v_and_b32 v{vL}, 63, v0
    s_and_b32 s{sG}, s2, 3
    v_readfirstlane_b32 s{sW}, v2
    s_bfe_u32 s{sROLE}, s2, 0x10003
    s_lshl_b32 s{sG}, s{sG}, 1
    s_or_b32 s{sG}, s{sG}, s{sROLE}
    s_bfe_u32 s{sBLK}, s2, 0x10002
    s_lshr_b32 s{sBP}, s2, 4
    v_lshlrev_b32 v{vLin}, 4, v{vL}
    s_and_b32 s{sSUB}, s{sBP}, 3
    s_lshl_b32 s{sSUB}, s{sSUB}, 1
    s_lshr_b32 s{sQ8}, s{sBP}, 2
    s_lshl_b32 s{sQ8}, s{sQ8}, 3
    s_mov_b32 s{SRD_WQ+2}, 0x400000
    s_mov_b32 s{SRD_WQ+3}, 0x00020000
    s_mov_b32 s{SRD_X+2}, 0x100000
    s_mov_b32 s{SRD_X+3}, 0x00020000
    v_lshrrev_b32 v40, 4, v{vL}
    v_and_b32 v41, 15, v{vL}
    v_xor_b32 v42, v41, v40
    v_lshlrev_b32 v42, 4, v42
    v_lshl_add_u32 v{vDX}, v40, 10, v42
    v_lshl_add_u32 v{vKD4}, v40, 8, v42
    v_mov_b32 v{vDW}, v{vLin}
    ''')
    if clsbp: a(f's_and_b32 s{sROLE}, s{sBP}, 1')
    if allE: a(f's_mov_b32 s{sROLE}, 0')
    if allL: a(f's_mov_b32 s{sROLE}, 1')
    for j in range(1, 4):
        a(f'v_xor_b32 v{vDW+j}, {j*32}, v{vLin}')
        a(f'v_xor_b32 v{vDX+j}, {j*64}, v{vDX}')
        a(f'v_add_u32 v{vDW+j}, {j*7168}, v{vDW+j}')
        a(f'v_add_u32 v{vDX+j}, {j*3072}, v{vDX+j}')
    def kslot_ops(n, dst, shift, base):
        return [f's_add_u32 s{sT1}, s{sSUB}, {n}', f's_and_b32 s{sT1}, s{sT1}, 7',
                f's_add_u32 s{sT2}, s{sQ8}, {n}', f's_and_b32 s{sT2}, s{sT2}, 24',
                f's_or_b32 s{sT1}, s{sT1}, s{sT2}', f's_lshl_b32 s{sT1}, s{sT1}, {shift}',
                f's_add_u32 s{dst}, s{sT1}, s{base}']
    a(f'''
    s_bfe_u32 s{sT1}, s{sW}, 0x10001
    s_and_b32 s{sT2}, s{sW}, 1
    s_mul_i32 s{sLM}, s{sT1}, {KB}
    s_lshl_b32 s{sAMV}, s{sT1}, 15
    s_lshl_b32 s{sAX}, s{sBP}, 1
    s_add_u32 s{sAX}, s{sAX}, s{sT1}
    s_lshl_b32 s{sAKV}, s{sAX}, 3
    s_add_u32 s{sAKV}, s{sAKV}, s{sG}
    s_lshl_b32 s{sAKV}, s{sAKV}, 17
    s_lshl_b32 s{sAX}, s{sAX}, 1
    s_add_u32 s{sAX}, s{sAX}, s{sT2}
    s_lshl_b32 s{sAX}, s{sAX}, 14
    s_lshl_b32 s{sT2}, s{sT2}, 12
    s_add_u32 s{sLM}, s{sLM}, s{sT2}
    s_add_u32 s{sAMV}, s{sAMV}, s{sT2}
    s_add_u32 s{sAMV}, s{sAMV}, {VA}
    s_add_u32 s{sAKV}, s{sAKV}, s{sT2}
    s_and_b32 s{sT1}, s{sW}, 3
    s_lshl_b32 s{sT1}, s{sT1}, 15
    s_lshl_b32 s{sWB}, s{sG}, 10
    s_add_u32 s{sWB}, s{sWB}, s{sT1}
    s_lshl_b32 s{sLO}, s{sSUB}, 17
    s_lshl_b32 s{sHI}, s{sQ8}, 17
    s_add_u32 s{sHB}, s{sHI}, s{sWB}
    s_cmp_lt_u32 s{sW}, 4
    s_cbranch_scc1 L_setup
    ''')
    if lprio is not None: a(f's_setprio {lprio}')
    K_, V_ = (lambda n: ('K', n)), (lambda n: ('V', n))
    PLANS = {
        'p12': dict(order=[K_(0), K_(1), V_(0), K_(2), V_(1), K_(3), V_(2), K_(4), K_(5), V_(3), K_(6), K_(7)], tail={},
                    win={-1: [None, None], 0: [('p', K_(5)), ('p', V_(3)), ('p', K_(6))], 1: [('p', K_(7)), None, None]}),
        'p10': dict(order=[K_(0), K_(1), V_(0), K_(2), V_(1), K_(3), K_(5), V_(3), K_(6), K_(7)], tail={27: V_(2), 30: K_(4)},
                    win={-1: [None, None], 0: [('p', K_(5)), ('p', V_(3)), ('p', K_(6))], 1: [('p', K_(7)), None, None]}),
        'p8': dict(order=[K_(0), K_(1), V_(0), K_(2), K_(5), V_(3), K_(6), K_(7)], tail={27: V_(1), 28: V_(2), 29: K_(3)},
                   win={-1: [None, ('d', K_(4))], 0: [('p', K_(5)), ('p', V_(3)), ('p', K_(6))], 1: [('p', K_(7)), None, None]}),
        'p8b': dict(order=[K_(0), K_(1), V_(0), K_(2), K_(5), V_(3), K_(6), K_(7)], tail={27: V_(1), 29: K_(3), 30: V_(2), 31: K_(4)},
                   win={-1: [None, None], 0: [('p', K_(5)), ('p', V_(3)), ('p', K_(6))], 1: [('p', K_(7)), None, None]}),
        'p6': dict(order=[K_(0), K_(1), V_(0), K_(2), K_(5), V_(3)], tail={27: V_(1), 28: V_(2), 29: K_(3)},
                   win={-1: [None, ('d', K_(4))], 0: [('p', K_(5)), ('p', V_(3)), ('d', K_(6))], 1: [None, None, ('d', K_(7))]}),
        'p4': dict(order=[K_(0), K_(1), V_(0), K_(2)], tail={27: V_(1), 28: V_(2), 29: K_(3)},
                   win={-1: [None, ('d', K_(4))], 0: [('d', K_(5)), ('d', V_(3)), ('d', K_(6))], 1: [None, None, ('d', K_(7))]}),
        'p9': dict(order=[K_(0), K_(1), V_(0), K_(2), K_(3), K_(5), V_(3), K_(6), K_(7)], tail={27: V_(1), 28: V_(2), 30: K_(4)},
                   win={-1: [None, None], 0: [('p', K_(5)), ('p', V_(3)), ('p', K_(6))], 1: [('p', K_(7)), None, None]}),
    }
    PL = PLANS[plan]
    kept = [x[1] for w in sorted(PL['win']) for x in PL['win'][w] if x and x[0] == 'p']
    assert len(kept) <= 4
    PARK = {}
    for i, u in enumerate(kept): PARK[u] = 64 + 16 * i
    for i, u in enumerate([u for u in PL['order'] if u not in kept]): PARK[u] = 128 + 16 * i
    class Loader:
        def __init__(self):
            self.vm = []; self.k = 0; self.ready = None
        def prep(self, u):
            so = (sT3, sRET)[self.k & 1]; self.k += 1
            kind, n = u[0], u[1]
            regs = len(u) > 2
            ops = []
            if kind == 'W':
                if n:
                    ops += [f's_add_u32 s{sLO}, s{sLO}, {1<<17}', f's_and_b32 s{sLO}, s{sLO}, {7<<17}']
                    if n % 8 == 0:
                        ops += [f's_add_u32 s{sHI}, s{sHI}, {8<<17}', f's_and_b32 s{sHI}, s{sHI}, {24<<17}', f's_add_u32 s{sHB}, s{sHI}, s{sWB}']
                ops.append(f's_add_u32 s{so}, s{sLO}, s{sHB}')
                m0 = f's_add_u32 m0, s{sLM}, {((n + 4) % 6)*T8}'
                S, vo, fl = SRD_WQ, lambda j: vDW + j, (u[2] if regs else wq_fl)
                regs = False
            elif kind == 'X':
                ops += [f's_add_u32 s{sT1}, s{sQ8}, {n*8}', f's_and_b32 s{sT1}, s{sT1}, 24', f's_lshl_b32 s{sT1}, s{sT1}, 5', f's_add_u32 s{so}, s{sT1}, s{sAX}']
                m0 = f's_add_u32 m0, s{sAMV}, {n*T8}'
                S, vo, fl = SRD_X, lambda j: vDX + j, ''
            else:
                ops.append(f's_xor_b32 s{so}, s{sAKV}, {n*T8}')
                if kind == 'K':
                    m0 = f's_add_u32 m0, s{sLM}, {(n % 6)*T8}'
                    S, vo, fl = SRD_K, lambda j: vKD4 + j, kv_fl
                else:
                    m0 = f's_add_u32 m0, s{sAMV}, {(n % 4)*T8}'
                    S, vo, fl = SRD_V, lambda j: vDV, kv_fl
            if regs:
                r = PARK[(kind, n)]
                lds = [f'buffer_load_dwordx4 v[{r+4*j}:{r+4*j+3}], v{vo(j)}, {srd(S)}, s{so} offen offset:{j*1024}{fl}' for j in range(4)]
                m0 = None
            else:
                lds = [f'buffer_load_dwordx4 v{vo(j)}, {srd(S)}, s{so} offen offset:{j*1024}{fl} lds' for j in range(4)]
            return ops, m0, lds
        def run(self, seq):
            us = [i for i, x in enumerate(seq) if not callable(x)]
            for i, x in enumerate(seq):
                if callable(x):
                    x(); continue
                if self.ready is None:
                    ops, m0, lds = self.prep(x)
                    for t in ops + ([m0] if m0 else []): a(t)
                else:
                    lds = self.ready
                self.ready = None
                if not self.vm and self.first: self.first()
                nx = [k for k in us if k > i]
                brk = nx and any(getattr(seq[k], 'brk', False) for k in range(i + 1, nx[0]))
                skip = nodma and x[0] == 'W' and x[1] >= 6
                if not skip: a(lds[0])
                m0 = None
                if nx and not brk:
                    ops, m0, self.ready = self.prep(seq[nx[0]])
                    for t in ops: a(t)
                if not skip:
                    for t in lds[1:]: a(t)
                    self.vm.append(x[:2])
                if m0: a(m0)
        def need(self, u):
            if u not in self.vm: return 0 if nodma else 1/0
            return 4 * (len(self.vm) - 1 - self.vm.index(u))
    def sel_srd():
        a(f'''
        s_cmp_eq_u32 s{sBLK}, 0
        s_waitcnt lgkmcnt(0)
        s_cselect_b32 s{SRD_WQ}, s22, s32
        s_cselect_b32 s{SRD_WQ+1}, s23, s33
        s_cselect_b32 s{SRD_X}, s16, s26
        s_cselect_b32 s{SRD_X+1}, s17, s27
        ''')
    LE, LL = Loader(), Loader()
    LE.first = LL.first = sel_srd
    a(f's_cmp_lg_u32 s{sROLE}, 0')
    a('s_cbranch_scc1 L_initL')
    LE.run([('W', 0, wqe_fl), ('X', 0), ('W', 1, wqe_fl)])
    a('s_branch L_setup')
    a.label('L_initL')
    a(f's_mov_b32 s{sROLE}, 2')
    LL.run([('X', 1), ('X', 2), ('X', 3)])

    a.label('L_setup')
    a(f'''
    s_mov_b32 s{SRD_K+2}, 0x2000000
    s_mov_b32 s{SRD_K+3}, 0x00020000
    s_mov_b32 s{SRD_V+2}, 0x2000000
    s_mov_b32 s{SRD_V+3}, 0x00020000
    s_lshl_b32 s{sT1}, s{sBLK}, 3
    s_lshl_b32 s{sID}, s{sBP}, 4
    s_or_b32 s{sID}, s{sID}, s{sT1}
    s_or_b32 s{sID}, s{sID}, s{sG}
    v_xor_b32 v{vKD4+1}, 64, v{vKD4}
    v_xor_b32 v{vKD4+2}, 0x80, v{vKD4}
    v_xor_b32 v{vKD4+3}, 0xc0, v{vKD4}
    v_add_u32 v{vPK}, s{sLM}, v{vLin}
    v_add_u32 v{vPV}, s{sAMV}, v{vLin}
    s_mov_b32 s{SRD_WO+2}, 0x400000
    s_mov_b32 s{SRD_WO+3}, 0x00020000
    s_mov_b32 s{SRD_WS+2}, 0x10000000
    s_mov_b32 s{SRD_WS+3}, 0x00020000
    s_mov_b32 s{sSC}, {fbits(128 ** -0.5 * 1.4426950408889634)}
    s_mov_b32 s{sSC+1}, s{sSC}
    s_mov_b32 s{sTHR}, {fbits(1024.0)}
    s_and_b32 s42, s{sW}, 3
    s_lshr_b32 s43, s{sW}, 2
    ''')
    sH, sB = 42, 43
    a(f'''
    v_lshrrev_b32 v42, 5, v{vL}
    v_and_b32 v43, 31, v{vL}
    v_bfe_u32 v44, v{vL}, 2, 2
    v_and_b32 v45, 1, v40
    v_lshlrev_b32 v45, 4, v45
    v_bfe_u32 v46, v{vL}, 1, 1
    v_lshl_add_u32 v45, v46, 3, v45
    v_and_b32 v46, 1, v{vL}
    ''')
    a(f'''
    v_lshl_add_u32 v47, v46, 7, v45
    v_lshl_add_u32 v47, v44, 5, v47
    v_lshl_add_u32 v47, v44, 10, v47
    s_lshl_b32 s{sT1}, s{sH}, 8
    v_add_u32 v47, s{sT1}, v47
    s_mov_b32 s{sT1}, {KB}
    v_mad_u32_u24 v{vAb}, v42, s{sT1}, v47
    v_xor_b32 v{vAb+1}, 32, v{vAb}
    v_xor_b32 v{vAb+2}, 64, v{vAb}
    v_xor_b32 v{vAb+3}, 0x60, v{vAb}
    ''')
    a(f'''
    v_xor_b32 v47, v42, v41
    v_lshlrev_b32 v47, 4, v47
    v_lshl_add_u32 v47, v43, 8, v47
    v_add_u32 v{vBb}, {VA}, v47
    ''')
    a(f'''
    v_lshlrev_b32 v47, 3, v42
    v_xor_b32 v47, v47, v41
    v_lshlrev_b32 v47, 4, v47
    v_lshl_add_u32 v47, v43, 8, v47
    s_mul_i32 s{sMK}, s{sB}, {KB}
    v_add_u32 v{vKC}, s{sMK}, v47
    ''')
    for s in range(1, 8):
        a(f'v_xor_b32 v{vKC+s}, {s*16}, v{vKC}')
    a(f'''
    v_lshl_add_u32 v47, v46, 5, v45
    v_lshl_add_u32 v47, v44, 6, v47
    v_lshl_add_u32 v47, v44, 8, v47
    v_lshl_add_u32 v47, v42, 10, v47
    s_lshl_b32 s{sMV}, s{sB}, 15
    s_add_u32 s{sMV}, s{sMV}, {VA}
    v_add_u32 v{vVC}, s{sMV}, v47
    v_xor_b32 v{vVC+1}, 64, v{vVC}
    v_xor_b32 v{vVC+2}, 0x80, v{vVC}
    v_xor_b32 v{vVC+3}, 0xc0, v{vVC}
    ''')
    a(f'''
    v_xor_b32 v47, v41, v40
    v_lshlrev_b32 v47, 4, v47
    v_lshl_add_u32 v47, v40, 8, v47
    s_and_b32 s{sT1}, s{sH}, 1
    s_lshl_b32 s{sT2}, s{sT1}, 7
    v_xor_b32 v{vDK}, s{sT2}, v47
    v_xor_b32 v{vDK+1}, 64, v{vDK}
    v_lshlrev_b32 v47, 2, v40
    v_xor_b32 v47, v41, v47
    v_lshlrev_b32 v47, 4, v47
    v_lshl_add_u32 v{vDV}, v40, 8, v47
    s_lshl_b32 s{sT2}, s{sT1}, 6
    v_xor_b32 v{vDO}, s{sT2}, v{vLin}
    v_xor_b32 v{vDO+1}, 32, v{vDO}
    ''')
    def rot_ops(r):
        if rot is None: return
        if rot == 'bp':
            a(f's_lshr_b32 s{sT1}, s{r}, 8'); a(f's_and_b32 s{sT1}, s{sT1}, {15<<13}')
        elif rot == 'b':
            a(f's_lshr_b32 s{sT1}, s{r}, 7'); a(f's_and_b32 s{sT1}, s{sT1}, {15<<13}')
        elif rot == 'g':
            a(f's_lshr_b32 s{sT1}, s{r}, 5'); a(f's_and_b32 s{sT1}, s{sT1}, {15<<13}')
        elif rot == 'h':
            a(f's_lshr_b32 s{sT1}, s{r}, 17'); a(f's_mul_i32 s{sT1}, s{sT1}, 0x9e3779b1'); a(f's_lshr_b32 s{sT1}, s{sT1}, 15'); a(f's_and_b32 s{sT1}, s{sT1}, {15<<13}')
        a(f's_or_b32 s{r}, s{r}, s{sT1}')
    rot_ops(sAKV)
    a(f'''
    s_lshl_b32 s{sT1}, s{sH}, 11
    s_add_u32 s{sMK}, s{sMK}, s{sT1}
    s_add_u32 s{sMV}, s{sMV}, s{sT1}
    s_lshl_b32 s{sKV}, s{sBP}, 1
    s_add_u32 s{sKV}, s{sKV}, s{sB}
    s_lshl_b32 s{sKV}, s{sKV}, 3
    s_add_u32 s{sKV}, s{sKV}, s{sG}
    s_lshl_b32 s{sKV}, s{sKV}, 17
    s_add_u32 s{sKV}, s{sKV}, s{sT1}
    ''')
    rot_ops(sKV)
    a(f'''
    s_lshl_b32 s{sWO}, s{sG}, 19
    s_lshl_b32 s{sT1}, s{sW}, 11
    s_add_u32 s{sWO}, s{sWO}, s{sT1}
    s_and_b32 s{sT1}, s{sH}, 1
    s_mul_i32 s{sT2}, s{sT1}, {KB}
    s_add_u32 s{sT2}, s{sT2}, {KA + 5*T8}
    s_lshl_b32 s{sT1}, s{sT1}, 15
    s_add_u32 s{sT1}, s{sT1}, {VA + 3*T8}
    s_cmp_lt_u32 s{sH}, 2
    s_cselect_b32 s{sT1}, s{sT2}, s{sT1}
    v_add_u32 v{vQX}, s{sT1}, v{vLin}
    s_cmp_eq_u32 s{sBLK}, 0
    s_waitcnt lgkmcnt(0)
    s_cselect_b32 s{SRD_K}, s18, s28
    s_cselect_b32 s{SRD_K+1}, s19, s29
    s_cselect_b32 s{SRD_V}, s20, s30
    s_cselect_b32 s{SRD_V+1}, s21, s31
    s_cselect_b32 s{SRD_WO}, s24, s34
    s_cselect_b32 s{SRD_WO+1}, s25, s35
    s_mov_b32 s{SRD_WS}, s40
    s_mov_b32 s{SRD_WS+1}, s41
    s_cmp_lt_u32 s{sW}, 4
    s_cbranch_scc1 L_cons
    s_cmp_lg_u32 s{sROLE}, 0
    s_cbranch_scc1 L_ldL
    ''')
    def park_write(u):
        r = PARK[u]
        for j in range(4):
            if u[0] == 'K': a(f'ds_write_b128 v{vPK}, v[{r+4*j}:{r+4*j+3}] offset:{(u[1] % 6)*T8 + j*1024}')
            else: a(f'ds_write_b128 v{vPV}, v[{r+4*j}:{r+4*j+3}] offset:{(u[1] % 4)*T8 + j*1024}')
    QS = (1, 3, 7, 15, 23, 31)
    def bar(L, n):
        def f():
            if n < 31:
                w = L.need(('W', n + 1))
                if (n + 1) % 8 == 0: w = min(w, L.need(('X', (n + 1) // 8)))
                a(f's_waitcnt vmcnt({min(w, 63)})')
            a('s_barrier')
            if n == -1: stamp(1)
            if qst and n in QS: stamp(2 + QS.index(n), True)
        return f
    def wo_flavour():
        for j in range(1, 4):
            a(f'v_subrev_u32 v{vDW+j}, {j*7168}, v{vDW+j}')
        a(f'''
        s_and_b32 s{sT1}, s{sW}, 3
        s_lshl_b32 s{sT1}, s{sT1}, 12
        s_lshl_b32 s{sWB}, s{sG}, 19
        s_add_u32 s{sWB}, s{sWB}, s{sT1}
        ''')
    seq = [('W', n) for n in range(2, QLA - 1)]
    tailu = [('K', 0), ('K', 1), ('V', 0)]
    ET = {0: {},
          1: {26: [K_(0)], 27: [K_(1), V_(0)], 28: [K_(2), V_(1)], 29: [K_(3), V_(2)], 30: [K_(4)]},
          2: {27: [K_(0)], 28: [K_(1), V_(0)], 29: [K_(2), V_(1)], 30: [K_(3)], 31: [V_(2), K_(4)]},
          3: {24: [V_(0)], 25: [V_(1)], 26: [K_(0)], 27: [K_(1), V_(2)], 28: [K_(2)], 29: [K_(3)], 30: [K_(4)]}}[eb]
    for n in range(-1, 32):
        seq.append(bar(LE, n))
        if n % 8 == xat and n < 24: seq.append(('X', n // 8 + 1))
        if n + QLA <= 31: seq.append(('W', n + QLA))
        elif tailu and n >= 26 and not eb: seq.append(tailu.pop(0))
        for u in ET.get(n, ()):
            assert n >= (26 + u[1] if u[0] == 'K' else 7 + 8 * u[1])
            seq.append(u)
        if n == 30: seq.append(wo_flavour)
    assert eb or not tailu
    if not eb: seq.append(('K', 2))
    LE.run(seq)
    a(f's_waitcnt vmcnt({LE.need(("K", 0))})')
    a('s_branch L_getq')
    a.label('L_ldL')
    if tlb:
        a(f'''
        v_lshrrev_b32 v34, 1, v{vL}
        v_lshlrev_b32 v34, 12, v34
        s_and_b32 s{sT1}, s{sAKV}, {0xfffc0000}
        s_and_b32 s{sT2}, s{sW}, 1
        s_lshl_b32 s{sT2}, s{sT2}, 17
        s_add_u32 s{sT1}, s{sT1}, s{sT2}
        buffer_load_dword v33, v34, {srd(SRD_K)}, s{sT1} offen
        buffer_load_dword v33, v34, {srd(SRD_V)}, s{sT1} offen
        ''')
        if tlb >= 2:
            a(f'''
            v_lshlrev_b32 v34, 12, v{vL}
            s_lshr_b32 s{sT1}, s{sG}, 1
            s_lshl_b32 s{sT1}, s{sT1}, 2
            s_and_b32 s{sT2}, s{sW}, 3
            s_add_u32 s{sT1}, s{sT1}, s{sT2}
            s_lshl_b32 s{sT1}, s{sT1}, 18
            buffer_load_dword v33, v34, {srd(SRD_WO)}, s{sT1} offen
            v_lshrrev_b32 v34, 3, v{vL}
            v_lshlrev_b32 v34, 12, v34
            s_lshr_b32 s{sT1}, s2, 1
            s_lshl_b32 s{sT1}, s{sT1}, 2
            s_add_u32 s{sT1}, s{sT1}, s{sT2}
            s_lshl_b32 s{sT1}, s{sT1}, 15
            buffer_load_dword v33, v34, {srd(SRD_WS)}, s{sT1} offen
            ''')
    def wq_touch():
        a(f'''
        v_lshrrev_b32 v34, 3, v{vL}
        v_and_b32 v33, 7, v{vL}
        v_lshlrev_b32 v34, 13, v34
        v_lshl_add_u32 v34, v33, 7, v34
        s_lshl_b32 s{sT1}, s{sBP}, 2
        s_and_b32 s{sT2}, s{sW}, 3
        s_add_u32 s{sT1}, s{sT1}, s{sT2}
        s_lshl_b32 s{sT1}, s{sT1}, 6
        s_add_u32 s{sT1}, s{sT1}, s{sG}
        s_lshl_b32 s{sT1}, s{sT1}, 10
        buffer_load_dword v33, v34, {srd(SRD_WQ)}, s{sT1} offen
        ''')
    seq = [('X', 0), ('W', 0, wq0_fl), ('W', 1, wq0_fl)]
    po = [u + ('r',) for u in PL['order']]
    if wqt: po.insert(wqt - 1, wq_touch)
    seq += po
    seq += [('W', n) for n in range(2, QLA - 1)]
    for n in range(-1, 32):
        seq.append(bar(LL, n))
        if n + QLA <= 31: seq.append(('W', n + QLA))
        if n in PL['tail']:
            u = PL['tail'][n]
            assert n >= (26 + u[1] if u[0] == 'K' else 7 + 8 * u[1])
            seq.append(u)
        if n in (7, 15, 23) and V_(n // 8) in PARK: seq.append(lambda n=n: park_write(('V', n // 8)))
        if 26 <= n <= 30 and K_(n - 26) in PARK: seq.append(lambda n=n: park_write(('K', n - 26)))
        if n == 30: seq.append(wo_flavour)
    LL.run(seq)
    a.label('L_getq')
    stamp(2)
    if lprio is not None: a('s_setprio 0')
    a('s_waitcnt lgkmcnt(0)')
    a('s_barrier')
    for s in range(8):
        a(f'ds_read_b128 v[{vQ+4*s}:{vQ+4*s+3}], v{vQX} offset:{s*1024}')
    a('s_branch L_attn')

    q = Q(a)
    a.label('L_cons')
    a(f'''
    s_lshl_b32 s{sSUB}, s{sSUB}, 5
    s_mov_b32 s{sPH}, 0
    ''')
    if pbo: a('s_mov_b32 s33, 1')
    if wot:
        if wot != 3:
            a(f's_cmp_lg_u32 s{sROLE}, 0')
            a('s_cbranch_scc1 L_wot')
        a(f'''
        s_lshl_b32 s{sT3}, s{sG}, 4
        s_add_u32 s{sT3}, s{sT3}, s{sBP}
        s_lshl_b32 s{sT3}, s{sT3}, 2
        s_add_u32 s{sT3}, s{sT3}, s{sW}
        s_lshl_b32 s{sT3}, s{sT3}, 13
        v_lshlrev_b32 v44, 3, v{vLin}
        buffer_load_dword v45, v44, {srd(SRD_WO)}, s{sT3} offen{' nt' if wop is not None else ''}
        ''')
        if wot == 2:
            a(f's_add_u32 s{sT1}, s{sT3}, {1 << 19}')
            a(f'buffer_load_dword v45, v44, {srd(SRD_WO)}, s{sT1} offen{" nt" if wop is not None else ""}')
        if wop:
            a('s_waitcnt vmcnt(0)')
            a(f'buffer_load_dword v45, v44, {srd(SRD_WO)}, s{sT3} offen{wop}')
            if wot == 2: a(f'buffer_load_dword v45, v44, {srd(SRD_WO)}, s{sT1} offen{wop}')
        a.label('L_wot')
    if kvt:
        assert rot is None
        a(f'''
        s_lshl_b32 s98, s{sW}, 6
        s_add_u32 s98, s98, {kvt[3]}
        s_cmp_eq_u32 s{sROLE}, 0
        s_cselect_b32 s98, -1, s98
        s_andn2_b32 s100, s{sAKV}, 0x1000
        s_bitcmp1_b32 s{sW}, 0
        s_cselect_b32 s101, {kvt[2]}, {kvt[1]}
        s_lshl_b32 s101, s101, 13
        s_add_u32 s100, s100, s101
        s_mov_b32 s101, {kvt[0]}
        v_lshlrev_b32 v46, 3, v{vLin}
        ''')
    if inred:
        a(f'''
        s_lshl_b32 s{sT1}, s2, 16
        s_lshl_b32 s{sT2}, s{sW}, 14
        s_add_u32 s16, s{sT1}, s{sT2}
        s_add_u32 s17, s16, 4096
        s_add_u32 s18, s16, 8192
        s_add_u32 s19, s16, 12288
        s_mov_b32 s20, 1
        s_mov_b32 s22, -2
        ''')
    if lc:
        a(f'''
        s_lshl_b32 s35, s{sBLK}, 7
        s_lshl_b32 s23, s{sBP}, 3
        s_add_u32 s35, s35, s23
        s_lshl_b32 s34, s2, 10
        s_add_u32 s34, s34, 0x1000000
        s_mov_b32 s24, s38
        s_mov_b32 s25, s39
        s_mov_b32 s26, 256
        s_mov_b32 s27, 0x00020000
        s_or_b32 s20, s{sROLE}, s{sW}
        s_cbranch_scc1 L_nc1
        v_mov_b32 v64, -1
        v_mov_b32 v65, -1
        v_mov_b32 v66, -1
        v_mov_b32 v67, -1
        buffer_store_dwordx4 v[64:67], v{vLin}, {srd(SRD_WS)}, s34 offen sc1
        ''')
        a.label('L_nc1')
    def rdA(F, t):
        if noread: return
        for e in range(2):
            q.issue(('A', t), f'ds_read_b64_tr_b16 v[{F+4*t+2*e}:{F+4*t+2*e+1}], v{vA+t} offset:{e*4096}')
    def rdB(F, u):
        if noread: return
        q.issue(('B', u), f'ds_read_b128 v[{F+16+4*u}:{F+16+4*u+3}], v{vB} offset:{u*32768}')
    def pm(F, t, u, zero=False):
        if nomfma: return
        d = acc(t, u)
        c = '0' if zero else f'v[{d}:{d+15}]'
        a(f'v_mfma_f32_32x32x16_bf16 v[{d}:{d+15}], v[{F+4*t}:{F+4*t+3}], v[{F+16+4*u}:{F+16+4*u+3}], {c}')
    a.label('L_phase')
    a(f'''
    s_mov_b32 s{sC}, 0
    s_mov_b32 s{sPOS}, {4*T8}
    v_xor_b32 v{vB}, s{sSUB}, v{vBb}
    ''')
    for t in range(4): a(f'v_add_u32 v{vA+t}, s{sPOS}, v{vAb+t}')
    a('s_waitcnt vmcnt(0) lgkmcnt(0)')
    a('s_barrier')
    if stamps:
        a(f's_cmp_lg_u32 s{sPH}, 0')
        a('s_cbranch_scc1 L_st5')
        stamp(1)
        a('s_branch L_st1')
        a.label('L_st5')
        stamp(5)
        a.label('L_st1')
        a('s_waitcnt lgkmcnt(0)')
    rdB(F0, 1); rdA(F0, 0); rdB(F0, 0); rdA(F0, 1); rdA(F0, 2); rdA(F0, 3)
    if inred:
        a('s_cmp_eq_u32 s20, 0')
        a('s_cbranch_scc1 L_ann')
        a.label('L_annr')
    if pbo:
        a('s_cmp_eq_u32 s33, 0')
        a('s_cbranch_scc1 L_pbo')
        a.label('L_pbor')
    def first_half(F, zero):
        q.wait(('A', 0)); pm(F, 0, 1, zero)
        a(f'''
        s_add_u32 s{sC}, s{sC}, 32
        s_add_u32 s{sT1}, s{sC}, s{sSUB}
        s_and_b32 s{sT1}, s{sT1}, 0xe0
        s_lshl_b32 s{sT2}, s{sC}, 5
        s_and_b32 s{sT2}, s{sT2}, 0x6000
        s_or_b32 s{sT1}, s{sT1}, s{sT2}
        ''')
        q.wait(('B', 0)); pm(F, 0, 0, zero)
        a(f'''
        s_add_u32 s{sPOS}, s{sPOS}, {T8}
        s_cmp_eq_u32 s{sPOS}, {6*T8}
        s_cselect_b32 s{sPOS}, 0, s{sPOS}
        v_xor_b32 v{vB}, s{sT1}, v{vBb}
        ''')
        q.wait(('A', 1)); pm(F, 1, 1, zero)
        for t in range(4): a(f'v_add_u32 v{vA+t}, s{sPOS}, v{vAb+t}')
        a(f's_cmp_eq_u32 s{sC}, 1024')
        pm(F, 1, 0, zero)
        a('s_waitcnt lgkmcnt(0)')
        q.clear()
        a('s_barrier')
    def second_half(F, Fn, zero):
        pm(F, 2, 1, zero)
        rdB(Fn, 1); rdA(Fn, 0); rdB(Fn, 0)
        pm(F, 3, 1, zero)
        rdA(Fn, 1); rdA(Fn, 2)
        pm(F, 2, 0, zero)
        rdA(Fn, 3)
        pm(F, 3, 0, zero)
    first_half(F0, True); second_half(F0, F1, True)
    a.label('L_cloop')
    saved = list(q.q)
    first_half(F1, False)
    a('s_cbranch_scc1 L_ctail')
    second_half(F1, F0, False)
    first_half(F0, False); second_half(F0, F1, False)
    assert q.q == saved
    if kvt:
        a(f'''
        s_cmp_lt_u32 s98, s{sC}
        s_cbranch_scc0 L_cloop
        s_add_u32 s98, s98, {kvt[4]}
        s_sub_u32 s101, s101, 1
        s_cmp_eq_u32 s101, 0
        s_cselect_b32 s98, -1, s98
        s_bitcmp1_b32 s{sW}, 0
        s_cbranch_scc1 L_tchv
        buffer_load_dword v47, v46, {srd(SRD_K)}, s100 offen{kvt[5]}
        s_add_u32 s100, s100, {T8}
        s_branch L_cloop
        ''')
        a.label('L_tchv')
        a(f'''
        buffer_load_dword v47, v46, {srd(SRD_V)}, s100 offen{kvt[5]}
        s_add_u32 s100, s100, {T8}
        ''')
    a('s_branch L_cloop')
    q.clear()
    a.label('L_ctail')
    pm(F1, 2, 1)
    a(f's_cmp_lg_u32 s{sPH}, 0')
    a('s_cbranch_scc1 L_otail')
    def scale_pack(d, st):
        for i in range(0, 16, 2):
            if pk:
                a(f'v_pk_mul_f32 v[{d+i}:{d+i+1}], v[{d+i}:{d+i+1}], s[{sSC}:{sSC+1}]')
            else:
                a(f'v_mul_f32 v{d+i}, s{sSC}, v{d+i}')
                a(f'v_mul_f32 v{d+i+1}, s{sSC}, v{d+i+1}')
        for i in range(8):
            a(f'v_cvt_pk_bf16_f32 v{st+i}, v{d+2*i}, v{d+2*i+1}')
    QST = [64, 72, 80, 112]
    def qx(t):
        scale_pack(acc(t, 1), QST[t])
        for c2 in range(2):
            r = QST[t] + 4 * c2
            a(f'ds_write_b128 v{vQX}, v[{r}:{r+3}] offset:{(2*t+c2)*1024}')
    pm(F1, 3, 1)
    qx(0)
    pm(F1, 2, 0)
    qx(1)
    pm(F1, 3, 0)
    qx(2); qx(3)
    stamp(2)
    a('s_waitcnt lgkmcnt(0)')
    a('s_barrier')
    for t in range(4):
        scale_pack(acc(t, 0), vQ + 8 * t)
    a(f'''
    s_mov_b32 s{sPH}, 1
    s_lshr_b32 s{sSUB}, s{sSUB}, 5
    ''')
    if pbo: a(f's_mov_b32 s33, s{sROLE}')
    if kvt: a('s_mov_b32 s98, -1')

    a.label('L_attn')
    if prio is not None:
        a(f's_cmp_lt_u32 s{sW}, 4')
        a('s_cbranch_scc1 L_noprio')
        a(f's_setprio {prio}')
        a.label('L_noprio')
    if inred and xr:
        bst = True
        a(f'''
        {'' if lc else f's_or_b32 s20, s{sROLE}, s{sW}'}
        s_lshl_b32 s21, s{sBLK}, 7
        s_lshl_b32 s23, s{sBP}, 3
        s_add_u32 s21, s21, s23
        s_lshr_b32 s23, s{sG}, 1
        {'s_mov_b32 s35, s21' if pf else 's_add_u32 s35, s21, s23'}
        s_lshl_b32 s34, s2, 10
        s_add_u32 s34, s34, 0x1000000
        s_xor_b32 s21, s21, 128
        s_mov_b32 s24, s38
        s_mov_b32 s25, s39
        s_mov_b32 s26, 256
        s_mov_b32 s27, 0x00020000
        s_and_b32 s28, s2, 0xf8
        s_xor_b32 s28, s28, 9
        s_lshl_b32 s28, s28, 3
        s_add_u32 s28, s28, s{sG}
        s_lshl_b32 s28, s28, {1 if lc else 2}
        s_and_b32 s23, s{sW}, {3 if lc else 7}
        s_add_u32 s28, s28, s23
        s_lshl_b32 s28, s28, {12 if lc else 11}
        s_add_u32 s29, s28, 0x20000
        s_add_u32 s30, s28, 0x40000
        s_add_u32 s31, s28, 0x60000
        v_mov_b32 v6, -1
        v_mov_b32 v7, -1
        v_mov_b32 v8, -1
        v_mov_b32 v9, -1
        ''')
    elif inred:
        a(f'''
        s_or_b32 s20, s{sROLE}, s{sW}
        s_and_b32 s21, s2, 0xf8
        s_mov_b32 s24, s38
        s_mov_b32 s25, s39
        s_mov_b32 s26, 256
        s_mov_b32 s27, 0x00020000
        s_lshr_b32 s23, s{sG}, 1
        {'s_add_u32 s35, s21, s23' if bst else ''}
        {'s_lshl_b32 s23, s23, 3' if bst else ''}
        s_lshl_b32 s23, {1 if bst else 256}, s23
        s_or_b32 s28, s2, 1
        s_lshl_b32 s28, s28, 3
        s_add_u32 s28, s28, s{sW}
        s_lshl_b32 s28, s28, 13
        s_add_u32 s29, s28, 4096
        v_mov_b32 v6, -1
        v_mov_b32 v7, -1
        v_mov_b32 v8, -1
        v_mov_b32 v9, -1
        ''')
    jobs = []
    for r in range(-1, 17):
        if r + 1 <= 15:
            for s in range(8): jobs.append((r, 'K', r + 1, s))
        if 1 <= r:
            order = [(c, dt) for c in range(2) for dt in range(4)] if r < 16 else [(c, dt) for dt in range(4) for c in range(2)]
            for c, dt in order: jobs.append((r, 'V', r - 1, (c, dt)))
    vm = [('K', 0)] * 4 + [('K', 1)] * 4 + [('V', 0)] * 4 + [('K', 2)] * 4
    if eb: vm = [u for n in sorted(ET) for u in ET[n] for _ in range(4)]
    state = dict(rd=0, pub=-1)
    def rd(j):
        r, kind, t, ix = jobs[j]
        F = vF + (j & 7) * 4
        if noard and 2 <= r <= 15: return
        if kind == 'K':
            q.issue(j, f'ds_read_b128 v[{F}:{F+3}], v{vKC+ix} offset:{(t % 6)*T8}')
        else:
            c, dt = ix
            for e in range(2):
                q.issue(j, f'ds_read_b64_tr_b16 v[{F+2*e}:{F+2*e+1}], v{vVC+dt} offset:{(t % 4)*T8 + (16*c+8*e)*256}')
    def reads_upto(j, la=LA):
        while state['rd'] < len(jobs) and state['rd'] <= j + la and jobs[state['rd']][0] <= state['pub']:
            n = 2 if jobs[state['rd']][1] == 'V' else 1
            if len(q.q) + n > 15: break
            rd(state['rd']); state['rd'] += 1
    def mm(j):
        r, kind, t, ix = jobs[j]
        F = vF + (j & 7) * 4
        q.wait(j)
        if kind == 'K':
            d = vS + (t & 1) * 16
            if ix == 0: c = '0' if t == 0 else f'v[{vNM}:{vNM+15}]'
            else: c = f'v[{d}:{d+15}]'
            a(f'v_mfma_f32_32x32x16_bf16 v[{d}:{d+15}], v[{F}:{F+3}], v[{vQ+4*ix}:{vQ+4*ix+3}], {c}')
        else:
            c, dt = ix
            d = vO + dt * 16
            p = vP + (t & 1) * 8 + c * 4
            cc = '0' if (t == 0 and c == 0) else f'v[{d}:{d+15}]'
            a(f'v_mfma_f32_32x32x16_bf16 v[{d}:{d+15}], v[{F}:{F+3}], v[{p}:{p+3}], {cc}')
    def fin(par, i, p0):
        r = []
        if i == 2:
            if pk: r.append(f'v_pk_add_f32 v[{vTS}:{vTS+1}], v[{vE}:{vE+1}], v[{p0}:{p0+1}]')
            else: r += [f'v_add_f32 v{vTS}, v{vE}, v{p0}', f'v_add_f32 v{vTS+1}, v{vE+1}, v{p0+1}']
        elif i > 2:
            if pk: r.append(f'v_pk_add_f32 v[{vTS}:{vTS+1}], v[{vTS}:{vTS+1}], v[{p0}:{p0+1}]')
            else: r += [f'v_add_f32 v{vTS}, v{vTS}, v{p0}', f'v_add_f32 v{vTS+1}, v{vTS+1}, v{p0+1}']
        r.append(f'v_cvt_pk_bf16_f32 v{vP+par*8+i//2}, v{p0}, v{p0+1}')
        return r
    def softmax_ops(par, addm=False):
        S = vS + par * 16
        ops = []
        for i in range(0, 16, 2):
            e0 = vE + (i & 7)
            if addm:
                ops.append(f'v_add_f32 v{S+i}, v{S+i}, v{vNM}')
                ops.append(f'v_add_f32 v{S+i+1}, v{S+i+1}, v{vNM}')
            ops.append(f'v_exp_f32 v{e0}, v{S+i}')
            ops.append(f'v_exp_f32 v{e0+1}, v{S+i+1}')
            if i >= 2:
                ops += fin(par, i - 2, vE + ((i - 2) & 7))
        ops += fin(par, 14, vE + 6)
        ops.append(f'v_add_f32 v{vTS}, v{vTS}, v{vTS+1}')
        return ops
    def max_ops(S):
        r = [f'v_max3_f32 v{vT}, v{S}, v{S+1}, v{S+2}', f'v_max3_f32 v{vT+1}, v{S+3}, v{S+4}, v{S+5}']
        for i in (6, 10):
            r.append(f'v_max3_f32 v{vT}, v{vT}, v{S+i}, v{S+i+1}')
            r.append(f'v_max3_f32 v{vT+1}, v{vT+1}, v{S+i+2}, v{S+i+3}')
        r.append(f'v_max3_f32 v{vT}, v{vT}, v{S+14}, v{S+15}')
        r.append(f'v_max_f32 v{vT}, v{vT}, v{vT+1}')
        r.append(f'v_mov_b32 v{vT+1}, v{vT}')
        r.append(f'v_permlane32_swap_b32 v{vT}, v{vT+1}')
        return r
    EW = {-1: [('K', 3), ('V', 1)], 0: [('K', 4), ('V', 2), ('K', 5)], 1: [('V', 3), ('K', 6), ('K', 7)]}
    if eb: EW = {-1: [None, None], 0: [('K', 5), ('V', 3), ('K', 6)], 1: [('K', 7), None, None]}
    LW = PL['win']
    vmL = [PL['tail'][n] for n in sorted(PL['tail']) for _ in range(4)]
    alts = []
    def kv_group(kind, t):
        if kind == 'V':
            return ([f's_add_u32 m0, s{sMV}, {(t % 4)*T8}', f's_xor_b32 s{sT3}, s{sKV}, {t*T8}'],
                    [f'buffer_load_dwordx4 v{vDV}, {srd(SRD_V)}, s{sT3} offen offset:{j*1024}{kv_fl} lds' for j in range(2)], ('V', t))
        return ([f's_add_u32 m0, s{sMK}, {(t % 6)*T8}', f's_xor_b32 s{sT3}, s{sKV}, {t*T8}'],
                [f'buffer_load_dwordx4 v{vDK+j}, {srd(SRD_K)}, s{sT3} offen offset:{j*1024}{kv_fl} lds' for j in range(2)], ('K', t))
    def issue_groups(w):
        flat = []
        if w in EW:
            for k, (e, l) in enumerate(zip(EW[w], LW[w])):
                if e is None:
                    assert l is None
                    continue
                pre, lds, tag = kv_group(*e)
                nm = f'{w+1}_{k}'
                flat.append(([f's_cmp_lg_u32 s{sROLE}, 0', f's_cbranch_scc1 L_{"alt" if l else "ret"}{nm}'] + pre + lds + [f'L_ret{nm}:'], [tag, tag], [l[1], l[1]] if l and l[0] == 'd' else []))
                flat.append(([], [], []))
                if l: alts.append((nm, l))
            return flat
        g = []
        if w + 2 <= 15: g.append(kv_group('V', w + 2))
        if lk == 6 and w + 6 <= 15: g.append(kv_group('K', w + 6))
        if nokv: g = []
        for n in dict(wow).get(w, ()):
            assert w >= 10 + n
            g.append((kslot_ops(n, sT3, 14, sWO) + [f's_add_u32 m0, s{sMK}, {((4 + n) % 6)*T8}'],
                      [f'buffer_load_dwordx4 v{vDO+j}, {srd(SRD_WO)}, s{sT3} offen offset:{j*1024}{wo0_fl if wo0_fl is not None and n < wo0_n else wo_fl} lds' for j in range(2)], ('W', n)))
        for pre, lds, tag in g:
            flat.append((pre + [lds[0]], [tag], [tag])); flat.append(([lds[1]], [tag], [tag]))
        if lk != 6:
            e = ('K', w + 6) if w + 6 <= 15 else None
            l = ('K', w + lk) if 8 <= w + lk <= 15 else None
            if lkm: l = ('K', lkm[w]) if w in lkm else None
            if ekm: e = ('K', ekm[w]) if w in ekm else None
            for u in (e, l): assert u is None or u[1] - 6 <= w <= u[1] - 3
            nfl = len(flat)
            nm = f'k{w}'
            if e:
                pre, lds, tag = kv_group(*e)
                flat.append(([f's_cmp_lg_u32 s{sROLE}, 0', f's_cbranch_scc1 L_{"alt" if l else "ret"}{nm}'] + pre + lds + [f'L_ret{nm}:'], [e, e], [l, l] if l else []))
                if l: alts.append((nm, ('d', l)))
            elif l:
                pre, lds, tag = kv_group(*l)
                flat.append(([f's_cmp_eq_u32 s{sROLE}, 0', f's_cbranch_scc1 L_ret{nm}'] + pre + lds + [f'L_ret{nm}:'], [], [l, l]))
        if kfirst and lk != 6 and len(flat) > nfl: flat.insert(0, flat.pop())
        if w == pw:
            if pself: flat.append((['s_branch L_pfw', 'L_pfwr:'], ['P'], ['P']))
            else: flat.append(([f's_cmp_eq_u32 s{sROLE}, 0', 's_cbranch_scc1 L_pfw', 'L_pfwr:'], ['P'], []))
        if inred and w == clrw:
            if fl: flat.append(([f's_cmp_ge_u32 s{sW}, 4', 's_cbranch_scc1 L_clr', 'L_clrr:'], [], []))
            else: flat.append(([f's_cmp_eq_u32 s{sROLE}, 0', 's_cbranch_scc1 L_clr', 'L_clrr:'], [] if lc else ['C'] * 8, []))
        return flat
    def emit_pend(pend, n=1):
        while pend and n:
            ins, tags, tagsL = pend.pop(0)
            for t in ins:
                if t.endswith(':'): a.label(t[:-1])
                else: a(t)
            vm.extend(tags); vmL.extend(tagsL)
            n -= 1
    def barrier(r):
        need = [('K', r + 1), ('V', r - 1)]
        def cnt(v):
            idx = [i for i, t in enumerate(v) if t in need]
            return len(v) - 1 - max(idx) if idx else 63
        n, nl = cnt(vm), cnt(vmL)
        if eth and eth[0] <= r <= eth[1]: n = min(n, eth[2])
        if nl < n and len(vm) > nl or nl > n and len(vmL) > n:
            a(f's_cmp_{"eq" if nl < n else "lg"}_u32 s{sROLE}, 0')
            a(f's_cbranch_scc1 L_bw{r}')
            a(f's_waitcnt vmcnt({min(n, nl)})')
            a.label(f'L_bw{r}')
            del vm[:max(0, len(vm) - n)]; del vmL[:max(0, len(vmL) - nl)]
            n = max(n, nl)
        else:
            n = min(n, nl)
            del vm[:max(0, len(vm) - n)]; del vmL[:max(0, len(vmL) - n)]
        a(f's_waitcnt vmcnt({n}) lgkmcnt(0)')
        q.clear()
        a('s_barrier')
        state['pub'] = r

    state['pub'] = -1
    reads_upto(-1, 8)
    pend = issue_groups(-1)
    j = 0
    for r in range(-1, 17):
        rj = [k for k in range(len(jobs)) if jobs[k][0] == r]
        n = len(rj)
        if r == -1: chunks = [[] for _ in rj]
        elif r == 0: chunks = spread(softmax_ops(0, True), n)
        elif r == 1: chunks = [[]] + spread(softmax_ops(1), n - 1)
        elif r <= 15 and not nosm: chunks = spread(softmax_ops(r & 1), n)
        else: chunks = [[] for _ in rj]
        if r == 15:
            extra = [f'v_lshrrev_b32 v42, 5, v{vL}', f'v_and_b32 v43, 15, v{vL}', f'v_lshlrev_b32 v42, 1, v42',
                     f'v_xor_b32 v42, v42, v43', f'v_lshlrev_b32 v42, 4, v42', f'v_and_b32 v43, 31, v{vL}',
                     f'v_lshl_add_u32 v42, v43, 8, v42',
                     f's_lshr_b32 s{sT1}, s{sQ8}, 3', f's_sub_u32 s{sT1}, s{sH}, s{sT1}', f's_and_b32 s{sT1}, s{sT1}, 3',
                     f's_lshl_b32 s{sT1}, s{sT1}, 13', f's_lshl_b32 s{sT2}, s{sB}, 15', f's_add_u32 s{sT1}, s{sT1}, s{sT2}',
                     f's_add_u32 s{sRET+0}, s{sT1}, {VA}', f'v_add_u32 v{vOW}, s{sRET}, v42']
            extra += [f'v_xor_b32 v{vOW+k}, {(4*(k>>1)+(k&1))*16}, v{vOW}' for k in range(1, 8)]
            late15 = extra
        for i, k in enumerate(rj):
            mm(k)
            if r == 16:
                c, dt = jobs[k][3]
                reads_upto(k)
                emit_pend(pend, 1 if i < 2 else -1)
                if i == 3:
                    a('s_waitcnt lgkmcnt(0)')
                    q.clear()
                    a('s_barrier')
                if c == 1 and dt >= 1:
                    fin_dt(dt - 1)
                continue
            reads_upto(k)
            emit_pend(pend)
            for t in chunks[i]: a(t)
            if i == n - 5:
                emit_pend(pend, -1)
                assert state['rd'] > rj[-1]
                if r == -1: stamp(3)
                if r == 15: stamp(4)
                barrier(r + 1)
                if ast and r + 1 in ast: stamp(1 + ast.index(r + 1), True)
                reads_upto(k)
                pend = issue_groups(r + 1)
        if r == -1:
            for t in max_ops(vS): a(t)
            a(f'v_max_f32 v{vT}, v{vT}, v{vT+1}')
            a(f'v_sub_f32 v{vNM}, 0, v{vT}')
            for i in range(1, 16): a(f'v_mov_b32 v{vNM+i}, v{vNM}')
        elif r == 0:
            a(f'v_mov_b32 v{vSUM}, v{vTS}')
        elif r <= 15:
            a(f's_mov_b32 s{sRET}, {r}')
            a(f'v_cmp_nge_f32 vcc, s{sTHR}, v{vTS}')
            a(f's_cbranch_vccnz L_slow{r & 1}')
            a.label(f'L_back{r}')
            a(f'v_add_f32 v{vSUM}, v{vSUM}, v{vTS}')
        if r == 15:
            a(f'v_mov_b32 v{vT}, v{vSUM}')
            for t in late15[:2]: a(t)
            a(f'v_permlane32_swap_b32 v{vT}, v{vSUM}')
            for t in late15[2:4]: a(t)
            a(f'v_add_f32 v{vSUM}, v{vSUM}, v{vT}')
            a(f'v_rcp_f32 v{vTS}, v{vSUM}')
            rest15 = late15[4:] + [f'v_mov_b32 v{vTS+1}, v{vTS}']
            def fin_dt(dt):
                if dt == 0:
                    for t in rest15: a(t)
                d = vO + dt * 16
                st = vS + dt * 8
                for i in range(0, 16, 2):
                    if pk: a(f'v_pk_mul_f32 v[{d+i}:{d+i+1}], v[{d+i}:{d+i+1}], v[{vTS}:{vTS+1}]')
                    else:
                        a(f'v_mul_f32 v{d+i}, v{vTS}, v{d+i}')
                        a(f'v_mul_f32 v{d+i+1}, v{vTS}, v{d+i+1}')
                for i in range(8):
                    a(f'v_cvt_pk_bf16_f32 v{st+i}, v{d+2*i}, v{d+2*i+1}')
                for c2 in range(2):
                    a(f'ds_write_b128 v{vOW+2*dt+c2}, v[{st+4*c2}:{st+4*c2+3}]')
    fin_dt(3)
    if prio is not None: a('s_setprio 0')
    a(f'''
    s_lshl_b32 s{sT1}, s{sSUB}, 5
    s_cmp_lt_u32 s{sW}, 4
    s_cselect_b32 s{sSUB}, s{sT1}, s{sSUB}
    s_cbranch_scc1 L_phase
    ''')
    if lprio is not None: a(f's_setprio {lprio}')
    a(f's_mov_b32 s{sC}, 6')
    a(f's_add_u32 s{sPOS}, s{sLM}, {4*T8}')
    a(f's_add_u32 s{sBEG}, s{sLM}, {6*T8}')
    for t in kslot_ops(6, sRET, 14, sWB): a(t)
    a('s_waitcnt vmcnt(0) lgkmcnt(0)')
    a('s_barrier')
    stamp(5); stamp(6)
    a.label('L_wo')
    a(f'''
    s_mov_b32 m0, s{sPOS}
    s_mov_b32 s{sT3}, s{sRET}
    s_waitcnt vmcnt(16)
    s_barrier
    ''')
    wl = [f'buffer_load_dwordx4 v{vDW+j}, {srd(SRD_WO)}, s{sT3} offen offset:{j*1024}{wo_fl} lds' for j in range(4)]
    if not nodma: a(wl[0])
    a(f'''
    s_add_u32 s{sPOS}, s{sPOS}, {T8}
    s_cmp_eq_u32 s{sPOS}, s{sBEG}
    s_cselect_b32 s{sPOS}, s{sLM}, s{sPOS}
    s_add_u32 s{sC}, s{sC}, 1
    ''')
    if not nodma: a(wl[1])
    for t in kslot_ops(f's{sC}', sRET, 14, sWB): a(t)
    a(f's_cmp_lt_u32 s{sC}, 32')
    if not nodma: a(wl[2]); a(wl[3])
    a('s_cbranch_scc1 L_wo')
    if fl:
        for n in (16, 12, 8, 4, 0):
            a(f's_waitcnt vmcnt({n})')
            a('s_barrier')
        a('s_branch L_ec')
        a.label('L_ec2')
        a('buffer_load_dword v11, off, s[24:27], s21 sc1')
        a.label('L_ec')
        a(f'''
        s_add_u32 s{sC}, s{sC}, 1
        s_waitcnt vmcnt(0)
        v_readfirstlane_b32 s{sT1}, v11
        s_cmp_ge_u32 s{sT1}, 4
        s_cbranch_scc1 L_ec3
        s_cmp_lt_u32 s{sC}, {1 << 17}
        s_cbranch_scc1 L_ec2
        ''')
        a.label('L_ec3')
        a(f'''
        s_barrier
        s_cmp_eq_u32 s{sROLE}, 0
        s_cbranch_scc1 L_red2
        s_branch L_fin
        ''')
    elif lc:
        a(f's_cmp_lg_u32 s{sROLE}, 0')
        a('s_cbranch_scc1 L_lend')
        for k in range(16):
            a(f'buffer_store_dwordx4 v[6:9], v{vLin}, {srd(SRD_WS)}, s{28+(k>>2)} offen offset:{(k&3)*1024} sc1')
        for n in (16, 12, 8, 4, 0):
            a(f's_waitcnt vmcnt({n + 16})')
            a('s_barrier')
        a('s_barrier')
        a('v_mov_b32 v47, 1')
        a('s_branch L_ec')
        a.label('L_ec2')
        a('buffer_load_dword v11, off, s[24:27], s21 sc1')
        a.label('L_ec')
        a(f'''
        s_add_u32 s{sC}, s{sC}, 1
        s_waitcnt vmcnt(0)
        v_readfirstlane_b32 s{sT1}, v11
        s_cmp_ge_u32 s{sT1}, 4
        s_cbranch_scc1 L_ec3
        s_cmp_lt_u32 s{sC}, {1 << 17}
        s_cbranch_scc1 L_ec2
        ''')
        a.label('L_ec3')
        a(f'''
        s_mov_b64 exec, 1
        buffer_atomic_add v47, off, s[24:27], s35 offset:4 sc1
        s_mov_b64 exec, -1
        s_branch L_red1
        ''')
        a.label('L_lend')
        a('s_add_u32 s21, s21, 4')
    if inred and not nochk and not fl: a('buffer_load_dword v46, off, s[24:27], s21 sc1')
    for n in (16, 12, 8, 4, 0) if not fl else ():
        a(f's_waitcnt vmcnt({n + (inred and not nochk)})')
        a('s_barrier')
    if inred and not fl:
        a(f'''
        s_cmp_lg_u32 s{sROLE}, 0
        s_cbranch_scc1 {'L_chk3' if nochk else 'L_chk'}
        s_barrier
        s_branch {'L_fin' if xexit else 'L_red1'}
        ''' if not pf else 's_branch L_chk')
        a.label('L_chk2')
        a('buffer_load_dword v46, off, s[24:27], s21 sc1')
        a.label('L_chk')
        a(f'''
        s_add_u32 s{sC}, s{sC}, 1
        s_waitcnt vmcnt(0)
        v_readfirstlane_b32 s{sT1}, v46
        {f's_cmp_ge_u32 s{sT1}, {16 if lc else 4 if pf else 0x01010101}' if xr else f's_and_b32 s{sT1}, s{sT1}, s23'}
        s_cbranch_scc1 L_chk3
        s_cmp_lt_u32 s{sC}, {1 << 17}
        s_cbranch_scc1 L_chk2
        ''')
        a.label('L_chk3')
        a('s_barrier')
        if pf:
            a(f's_cmp_eq_u32 s{sROLE}, 0')
            a('s_cbranch_scc1 L_red1')
    if not fl: a('s_branch L_fin')

    a.label('L_otail')
    stamp(6)
    if not inred: a(f'''
    s_lshl_b32 s{sT1}, s2, 16
    s_lshl_b32 s{sT2}, s{sW}, 14
    s_add_u32 s16, s{sT1}, s{sT2}
    s_add_u32 s17, s16, 4096
    s_add_u32 s18, s16, 8192
    s_add_u32 s19, s16, 12288
    ''')
    def st(t, u):
        d = acc(t, u)
        for i in range(8):
            a(f'v_cvt_pk_bf16_f32 v{d+i}, v{d+2*i}, v{d+2*i+1}')
        if inred and not fl:
            for i in range(8):
                a(f'v_min_u32 v{d+i}, s22, v{d+i}')
        for c2 in range(2):
            a(f'buffer_store_dwordx4 v[{d+4*c2}:{d+4*c2+3}], v{vLin}, {srd(SRD_WS)}, s{16+2*u+(t>>1)} offen offset:{(t&1)*2048+c2*1024}{st_fl}')
    pm(F1, 3, 1)
    st(0, 1)
    pm(F1, 2, 0)
    st(0, 0)
    pm(F1, 3, 0)
    st(1, 1); st(1, 0); st(2, 1); st(3, 1); st(2, 0); st(3, 0)
    if fl:
        sPEND, sNEW, sM, sDID, sOUT = 98, 99, 100, 101, 97
        LIM = 1 << (20 if pd else 17)
        a(f'''
        s_and_b32 s{sT1}, s34, 0xffffe000
        s_xor_b32 s{sT1}, s{sT1}, 0x2000
        s_lshl_b32 s{sT2}, s{sW}, 11
        s_add_u32 s{sT1}, s{sT1}, s{sT2}
        s_lshl_b32 s{sT2}, s{sG}, 7
        s_add_u32 s{sT1}, s{sT1}, s{sT2}
        v_mov_b32 v47, {1 if flat_ else 0}
        s_mov_b64 exec, 1
        s_waitcnt vmcnt(0)
        buffer_{'atomic_add' if flat_ else 'store_dword'} v47, off, {srd(SRD_WS)}, s{sT1} sc1
        s_mov_b64 exec, -1
        s_cmp_lg_u32 s{sROLE}, 0
        s_cbranch_scc1 L_fin
        ''')
        a.label('L_red2')
        a(f'''
        v_and_b32 v5, 7, v{vL}
        v_lshrrev_b32 v6, 3, v{vL}
        v_lshlrev_b32 v2, 10, v5
        v_lshl_add_u32 v2, v6, 4, v2
        v_lshlrev_b32 v3, 11, v6
        v_lshl_add_u32 v3, v5, 4, v3
        v_lshlrev_b32 v4, 7, v5
        v_mov_b32 v5, -1
        s_and_b32 s{sT1}, s2, 0xf8
        s_xor_b32 s{sT1}, s{sT1}, 8
        s_lshl_b32 s{sT1}, s{sT1}, 16
        s_lshl_b32 s{sT2}, s{sG}, 13
        s_add_u32 s{sT1}, s{sT1}, s{sT2}
        s_lshl_b32 s{sT2}, s{sB}, 13
        s_add_u32 s{sT1}, s{sT1}, s{sT2}
        s_lshl_b32 s{sT2}, s{sH}, 7
        s_add_u32 s68, s{sT1}, s{sT2}
        ''')
        for g in range(1, 8): a(f's_add_u32 s{68+g}, s68, {g << 16}')
        a(f'''
        s_lshl_b32 s{sOUT}, s{sBP}, 17
        s_lshl_b32 s{sT1}, s{sW}, 14
        s_add_u32 s{sOUT}, s{sOUT}, s{sT1}
        s_lshl_b32 s{sT1}, s{sBLK}, 10
        s_xor_b32 s{sT1}, s{sT1}, 1024
        s_add_u32 s{sOUT}, s{sOUT}, s{sT1}
        s_lshl_b32 s{sT1}, s{sG}, 7
        s_add_u32 s{sOUT}, s{sOUT}, s{sT1}
        s_mov_b32 s28, s36
        s_mov_b32 s29, s37
        s_mov_b32 s30, 0x200000
        s_mov_b32 s31, 0x00020000
        s_mov_b32 s23, 0xffff0000
        s_mov_b32 s{sPEND}, 255
        s_mov_b32 s{sNEW}, 0
        s_mov_b32 s{sC}, 0
        s_mov_b32 s{sDID}, 0
        s_mov_b32 s{sM}, -1
        ''')
        def unp(g):
            for i in range(8):
                a(f'v_lshlrev_b32 v{96+16*g+2*i}, 16, v{16+8*g+i}')
                a(f'v_and_b32 v{96+16*g+2*i+1}, s23, v{16+8*g+i}')
        a.label('L_poll')
        a(f'''
        s_mov_b32 exec_lo, s{sPEND}
        s_mov_b32 exec_hi, 0
        buffer_load_dword v5, v4, {srd(SRD_WS)}, s34 offen sc1
        s_waitcnt vmcnt({pd})
        v_cmp_ne_u32 vcc, -1, v5
        s_mov_b64 exec, -1
        {'' if pd else f's_mov_b32 s{sDID}, s{sNEW}'}
        s_and_b32 s{sNEW}, vcc_lo, s{sPEND}
        s_cbranch_scc0 L_none
        s_andn2_b32 s{sPEND}, s{sPEND}, s{sNEW}
        ''')
        for g in range(8):
            a(f's_bitcmp1_b32 s{sNEW}, {g}')
            a(f's_cbranch_scc0 L_pl{g}')
            for hi in range(2):
                r = 16 + 8 * g + 4 * hi
                a(f'buffer_load_dwordx4 v[{r}:{r+3}], v2, {srd(SRD_WS)}, s{68+g} offen offset:{hi*512} sc1')
            a.label(f'L_pl{g}')
        if pd:
            a(f's_or_b32 s{sDID}, s{sDID}, s{sNEW}')
            a(f's_add_u32 s{sM}, s{sC}, {pd}')
        a.label('L_none')
        if pd: a(f's_cmp_lg_u32 s{sC}, s{sM}')
        else: a(f's_cmp_eq_u32 s{sDID}, 0')
        a('s_cbranch_scc1 L_noup')
        a.label('L_up')
        for g in range(8):
            a(f's_bitcmp1_b32 s{sDID}, {g}')
            a(f's_cbranch_scc0 L_pu{g}')
            unp(g)
            a.label(f'L_pu{g}')
        if pd: a(f's_mov_b32 s{sDID}, 0')
        a.label('L_noup')
        a(f'''
        s_cmp_eq_u32 s{sPEND}, 0
        s_cbranch_scc1 L_last
        s_add_u32 s{sC}, s{sC}, 1
        ''')
        if psleep: a(f's_sleep {psleep}')
        a(f'''
        s_cmp_lt_u32 s{sC}, {LIM}
        s_cbranch_scc1 L_poll
        s_mov_b32 s{sPEND}, 0
        ''')
        a.label('L_last')
        a(f'''
        {'' if pd else f's_mov_b32 s{sDID}, s{sNEW}'}
        s_mov_b32 s{sNEW}, 0
        s_cmp_lg_u32 s{sDID}, 0
        s_waitcnt vmcnt(0)
        s_cbranch_scc1 L_up
        ''')
        def addp(d, x):
            for i in range(0, 16, 2):
                a(f'v_pk_add_f32 v[{96+16*d+i}:{97+16*d+i}], v[{96+16*d+i}:{97+16*d+i}], v[{96+16*x+i}:{97+16*x+i}]')
        for d, x in ((0, 1), (2, 3), (4, 5), (6, 7), (0, 2), (4, 6), (0, 4)): addp(d, x)
        for i in range(8):
            a(f'v_cvt_pk_bf16_f32 v{48+i}, v{96+2*i}, v{97+2*i}')
        a(f'buffer_store_dwordx4 v[48:51], v3, s[28:31], s{sOUT} offen')
        a(f'buffer_store_dwordx4 v[52:55], v3, s[28:31], s{sOUT} offen offset:128')
    elif inred:
        sPEND, sHOT, sM, sA, sHB2, sOUT = 98, 99, 100, 101, 96, 97
        LIM = 1 << 17
        a(f'''
        s_cmp_lg_u32 s{sROLE}, 0
        s_cbranch_scc1 L_fin
        {'s_branch L_fin' if xexit else ''}
        s_waitcnt vmcnt(0)
        ''')
        a.label('L_red1')
        a(f'''
        s_barrier
        s_mov_b32 s{sC}, 0
        s_cmp_lg_u32 s{sW}, 0
        s_cbranch_scc1 L_red2
        v_mov_b32 v47, 1
        s_mov_b64 exec, 1
        ''')
        if pf:
            a(f'''
            s_mov_b64 exec, 15
            v_mov_b32 v47, 0
            v_lshlrev_b32 v45, 11, v{vL}
            v_lshlrev_b32 v44, 7, v{vL}
            s_and_b32 s{sT1}, s34, 0xffffe000
            s_xor_b32 s{sT1}, s{sT1}, 0x2000
            s_lshl_b32 s{sT2}, s{sG}, 6
            s_add_u32 s{sT1}, s{sT1}, s{sT2}
            buffer_store_dword v47, v45, {srd(SRD_WS)}, s{sT1} offen sc1
            ''')
            a.label('L_cnt')
            a(f'''
            buffer_load_dword v46, v44, {srd(SRD_WS)}, s34 offen sc1
            s_add_u32 s{sC}, s{sC}, 1
            s_waitcnt vmcnt(0)
            v_cmp_ne_u32 vcc, 0, v46
            s_cbranch_vccz L_cntd
            s_sleep {csleep}
            s_cmp_lt_u32 s{sC}, {LIM}
            s_cbranch_scc1 L_cnt
            s_branch L_cntd
            ''')
        if xm == 4:
            a('s_sleep 127'); a('s_sleep 60'); a('s_branch L_cntd')
        a('buffer_store_byte v47, off, s[24:27], s35 offset:4 sc1' if bst else 'buffer_atomic_add v47, off, s[24:27], s21 sc1')
        if xm == 5: a('s_branch L_cntd')
        if xm == 6: a(f's_mov_b32 s{sC}, {LIM}')
        a.label('L_cntx' if pf else 'L_cnt')
        a(f'''
        buffer_load_dword v46, off, s[24:27], s21 {'offset:4 ' if bst else ''}sc1
        s_add_u32 s{sC}, s{sC}, 1
        s_waitcnt vmcnt(0)
        v_readfirstlane_b32 s{sT1}, v46
        {f's_cmp_eq_u32 s{sT1}, 0x01010101' if bst else f's_bitcmp1_b32 s{sT1}, 2'}
        s_cbranch_scc1 L_cntd
        s_sleep {csleep}
        s_cmp_lt_u32 s{sC}, {LIM}
        s_cbranch_scc1 L_cnt
        ''')
        a.label('L_cntd')
        a('s_mov_b64 exec, -1')
        a.label('L_red2')
        a(f'''
        v_and_b32 v5, 7, v{vL}
        v_lshrrev_b32 v6, 3, v{vL}
        v_lshlrev_b32 v2, 10, v5
        v_lshl_add_u32 v2, v6, 4, v2
        v_lshlrev_b32 v3, 11, v6
        v_lshl_add_u32 v3, v5, 4, v3
        v_and_b32 v4, 3, v{vL}
        v_lshlrev_b32 v4, 17, v4
        v_mov_b32 v5, -1
        s_and_b32 s{sT1}, s2, 0xf8
        {f's_xor_b32 s{sT1}, s{sT1}, 8' if xr else ''}
        s_lshl_b32 s{sT1}, s{sT1}, 16
        s_lshl_b32 s{sT2}, s{sG}, 13
        s_add_u32 s{sT1}, s{sT1}, s{sT2}
        s_lshl_b32 s{sT2}, s{sW}, 7
        s_add_u32 s{sHB2}, s{sT1}, s{sT2}
        s_add_u32 s{sHB2}, s{sHB2}, {65536 + hint}
        s_lshl_b32 s{sT2}, s{sB}, 13
        s_add_u32 s{sT1}, s{sT1}, s{sT2}
        s_lshl_b32 s{sT2}, s{sH}, 7
        s_add_u32 s68, s{sT1}, s{sT2}
        ''')
        for g in range(1, 8): a(f's_add_u32 s{68+g}, s68, {g << 16}')
        a(f'''
        s_lshl_b32 s{sOUT}, s{sBP}, 17
        s_lshl_b32 s{sT1}, s{sW}, 14
        s_add_u32 s{sOUT}, s{sOUT}, s{sT1}
        s_lshl_b32 s{sT1}, s{sBLK}, 10
        {f's_xor_b32 s{sT1}, s{sT1}, 1024' if xr else ''}
        s_add_u32 s{sOUT}, s{sOUT}, s{sT1}
        s_lshl_b32 s{sT1}, s{sG}, 7
        s_add_u32 s{sOUT}, s{sOUT}, s{sT1}
        s_mov_b32 s28, s36
        s_mov_b32 s29, s37
        s_mov_b32 s30, 0x200000
        s_mov_b32 s31, 0x00020000
        s_mov_b32 s23, 0xffff0000
        s_mov_b32 s{sPEND}, 15
        s_mov_b32 s{sHOT}, 0
        s_mov_b32 s{sM+0}, 0
        s_barrier
        ''')
        if rst: stamp(1, True)
        def ld(k, g, base=16):
            for hi in range(2):
                r = base + 8 * k + 4 * hi
                a(f'buffer_load_dwordx4 v[{r}:{r+3}], v2, {srd(SRD_WS)}, s{68+g} offen offset:{hi*512} sc1')
        def unpack(k, dst, base=16):
            for i in range(8):
                a(f'v_lshlrev_b32 v{dst+2*i}, 16, v{base+8*k+i}')
                a(f'v_and_b32 v{dst+2*i+1}, s23, v{base+8*k+i}')
        def addto(src):
            for i in range(0, 16, 2):
                a(f'v_pk_add_f32 v[{48+i}:{49+i}], v[{48+i}:{49+i}], v[{src+i}:{src+i+1}]')
        if xm in (1, 4, 5, 6): a('s_branch L_fin')
        if xm != 3:
            for k in range(4): ld(k, 2 * k, 128)
        if xm == 2:
            a('s_waitcnt vmcnt(0)')
            a('s_branch L_fin')
        a(f's_mov_b32 s{sC}, 0')
        a.label('L_poll')
        a(f'''
        s_and_b32 s{sA}, s{sPEND}, s{sHOT}
        s_andn2_b32 s{sM}, s{sPEND}, s{sHOT}
        s_cbranch_scc0 L_nohint
        s_mov_b32 exec_lo, s{sM}
        s_mov_b32 exec_hi, 0
        buffer_load_dword v5, v4, {srd(SRD_WS)}, s{sHB2} offen sc1
        s_mov_b64 exec, -1
        ''')
        a.label('L_nohint')
        for k in range(4):
            a(f's_bitcmp1_b32 s{sA}, {k}')
            a(f's_cbranch_scc0 L_pl{k}')
            ld(k, 2 * k + 1)
            a.label(f'L_pl{k}')
        a(f's_cmp_lg_u32 s{sC}, 1')
        a('s_cbranch_scc1 L_noa')
        for k in range(4):
            unpack(k, 48 if k == 0 else 160, 128)
            if k: addto(160)
        if rst: stamp(2, True)
        a.label('L_noa')
        a('s_waitcnt vmcnt(0)')
        for k in range(4):
            r = 16 + 8 * k
            a(f'''
            s_bitcmp1_b32 s{sA}, {k}
            s_cbranch_scc0 L_pc{k}
            v_max3_u32 v6, v{r}, v{r+1}, v{r+2}
            v_max3_u32 v7, v{r+3}, v{r+4}, v{r+5}
            v_max3_u32 v6, v6, v{r+6}, v{r+7}
            v_max_u32 v6, v6, v7
            v_cmp_eq_u32 vcc, -1, v6
            s_cbranch_vccnz L_pc{k}
            s_bitset0_b32 s{sPEND}, {k}
            ''')
            unpack(k, 64 + 16 * k)
            a.label(f'L_pc{k}')
        a(f'''
        v_cmp_ne_u32 vcc, -1, v5
        s_and_b32 s{sT1}, vcc_lo, s{sM}
        s_or_b32 s{sHOT}, s{sHOT}, s{sT1}
        s_cmp_eq_u32 s{sPEND}, 0
        s_cbranch_scc1 L_sum
        s_add_u32 s{sC}, s{sC}, 1
        ''')
        if psleep:
            a(f'''
            s_and_b32 s{sT1}, s{sPEND}, s{sHOT}
            s_cbranch_scc1 L_nosl
            s_sleep {psleep}
            ''')
            a.label('L_nosl')
        a(f'''
        s_cmp_lt_u32 s{sC}, {LIM}
        s_cbranch_scc1 L_poll
        ''')
        a.label('L_sum')
        if rst: stamp(3, True)
        for k in range(4): addto(64 + 16 * k)
        for i in range(8):
            a(f'v_cvt_pk_bf16_f32 v{48+i}, v{48+2*i}, v{49+2*i}')
        a(f'buffer_store_dwordx4 v[48:51], v3, s[28:31], s{sOUT} offen')
        a(f'buffer_store_dwordx4 v[52:55], v3, s[28:31], s{sOUT} offen offset:128')
    a.label('L_fin')
    if stamps:
        a('s_waitcnt vmcnt(0)')
        stamp(7)
        a('s_waitcnt lgkmcnt(0)')
        for k in range(8):
            a(f'v_mov_b32 v{48+k}, s{STAMP0+2*k}')
        a(f'''
        s_lshl_b32 s{sT1}, s2, 3
        s_add_u32 s{sT1}, s{sT1}, s{sW}
        s_lshl_b32 s{sT1}, s{sT1}, 5
        s_add_u32 s{sT1}, s{sT1}, 0x8000000
        v_mov_b32 v41, 0
        v_cmp_eq_u32 vcc, 0, v{vL}
        s_and_saveexec_b64 s[42:43], vcc
        buffer_store_dwordx4 v[48:51], v41, {srd(SRD_WS)}, s{sT1} offen
        buffer_store_dwordx4 v[52:55], v41, {srd(SRD_WS)}, s{sT1} offen offset:16
        ''')
    a.label('L_exit')
    a('s_endpgm')

    if inred:
        a.label('L_ann')
        a(f'''
        s_mov_b32 s20, 1
        v_mov_b32 v47, {1 if bst else 's23'}
        s_mov_b64 exec, 1
        {'buffer_atomic_add v47, off, s[24:27], s35 sc1' if pf else 'buffer_store_byte v47, off, s[24:27], s35 sc1' if bst else 'buffer_atomic_add v47, off, s[24:27], s21 sc1'}
        s_mov_b64 exec, -1
        s_branch L_annr
        ''')
        a.label('L_clr')
        if lc:
            if not fl:
                a(f's_cmp_lt_u32 s{sW}, 4')
                a('s_cbranch_scc1 L_clrr')
            a('buffer_load_dword v11, off, s[24:27], s21 sc1')
            a('s_branch L_clrr')
        for k in range(0 if noclr or lc else 8):
            if xr: a(f'buffer_store_dwordx4 v[6:9], v{vLin}, {srd(SRD_WS)}, s{28+(k>>1)} offen offset:{(k&1)*1024} sc1')
            else: a(f'buffer_store_dwordx4 v[6:9], v{vLin}, {srd(SRD_WS)}, s{28+(k>>2)} offen offset:{(k&3)*1024} sc1')
        if pf and not lc:
            a(f's_cmp_lg_u32 s{sW}, 0')
            a('s_cbranch_scc1 L_clrr')
            a(f'buffer_store_dwordx4 v[6:9], v{vLin}, {srd(SRD_WS)}, s34 offen sc1')
        a('s_branch L_clrr')
    if pw is not None:
        a.label('L_pfw')
        a(f'''
        s_or_b32 s{sT3}, s{sG}, {0 if pself else 1}
        s_lshl_b32 s{sT3}, s{sT3}, 4
        s_add_u32 s{sT3}, s{sT3}, s{sBP}
        s_lshl_b32 s{sT3}, s{sT3}, 3
        s_add_u32 s{sT3}, s{sT3}, s{sW}
        s_lshl_b32 s{sT3}, s{sT3}, 12
        v_lshlrev_b32 v11, 2, v{vLin}
        buffer_load_dword v11, v11, {srd(SRD_WO)}, s{sT3} offen{pwfl}
        s_branch L_pfwr
        ''')
    if pbo:
        a.label('L_pbo')
        a(f'''
        s_or_b32 s{sT3}, s{sG}, 1
        s_lshl_b32 s{sT3}, s{sT3}, 4
        s_add_u32 s{sT3}, s{sT3}, s{sBP}
        s_lshl_b32 s{sT3}, s{sT3}, 2
        s_add_u32 s{sT3}, s{sT3}, s{sW}
        s_lshl_b32 s{sT3}, s{sT3}, 13
        v_lshlrev_b32 v46, 3, v{vLin}
        buffer_load_dword v46, v46, {srd(SRD_WO)}, s{sT3} offen{pwfl}
        s_branch L_pbor
        ''')
    for nm, (kind, u) in alts:
        a.label(f'L_alt{nm}')
        if kind == 'p':
            a(f's_cmp_eq_u32 s{sROLE}, 1')
            a(f's_cbranch_scc1 L_ret{nm}')
            park_write(u)
        else:
            pre, lds, tag = kv_group(*u)
            for t in pre + lds: a(t)
        a(f's_branch L_ret{nm}')

    for par in range(2):
        S = vS + par * 16
        a.label(f'L_slow{par}')
        a('s_nop 7')
        a('s_nop 7')
        for t in max_ops(S): a(t)
        a(f'v_max3_f32 v{vT}, v{vT}, v{vT+1}, 0')
        a(f'v_exp_f32 v{vT+1}, -v{vT}')
        for i in range(32):
            a(f'v_sub_f32 v{vS+i}, v{vS+i}, v{vT}')
        for i in range(16):
            a(f'v_sub_f32 v{vNM+i}, v{vNM+i}, v{vT}')
        for i in range(64):
            a(f'v_mul_f32 v{vO+i}, v{vT+1}, v{vO+i}')
        a(f'v_mul_f32 v{vSUM}, v{vT+1}, v{vSUM}')
        for t in softmax_ops(par): a(t)
        rs = [r for r in range(1, 16) if (r & 1) == par]
        for r in rs[:-1]:
            a(f's_cmp_eq_u32 s{sRET}, {r}')
            a(f's_cbranch_scc1 L_back{r}')
        a(f's_branch L_back{rs[-1]}')

    if inred:
        lines, n = hz.fix(a.lines, verbose='-v' in sys.argv)
        print('hazard nops inserted (states):', n)
        return file_text([(None, 256, 512, 163840)], '\n'.join(lines) + '\n', [descriptor(NAME, 256, 256)])
    kernel_begin(a, RED)
    a(f'''
    s_cmp_ge_u32 s2, 512
    s_cbranch_scc1 L_rexit
    s_load_dwordx2 s[4:5], s[0:1], 80
    s_load_dwordx2 s[8:9], s[0:1], 96
    v_and_b32 v1, 7, v0
    v_bfe_u32 v2, v0, 3, 3
    v_bfe_u32 v3, v0, 6, 1
    v_lshrrev_b32 v6, 7, v0
    v_lshl_add_u32 v2, v6, 3, v2
    v_lshlrev_b32 v4, 10, v1
    v_lshl_add_u32 v4, v3, 9, v4
    v_lshl_add_u32 v4, v2, 4, v4
    v_lshlrev_b32 v5, 11, v2
    v_lshl_add_u32 v5, v3, 7, v5
    v_lshl_add_u32 v5, v1, 4, v5
    s_lshr_b32 s12, s2, 4
    s_lshl_b32 s14, s12, 19
    s_bfe_u32 s13, s2, 0x30001
    s_lshl_b32 s15, s13, 13
    s_add_u32 s14, s14, s15
    s_and_b32 s17, s2, 1
    s_lshl_b32 s15, s17, 8
    s_add_u32 s14, s14, s15
    s_lshr_b32 s16, s12, 1
    s_lshl_b32 s16, s16, 17
    s_and_b32 s15, s2, 3
    s_lshl_b32 s15, s15, 15
    s_add_u32 s16, s16, s15
    s_and_b32 s15, s12, 1
    s_lshl_b32 s15, s15, 10
    s_add_u32 s16, s16, s15
    s_bfe_u32 s15, s2, 0x20002
    s_lshl_b32 s15, s15, 8
    s_add_u32 s16, s16, s15
    s_mov_b32 s6, 0x200000
    s_mov_b32 s7, 0x00020000
    s_mov_b32 s10, 0x10000000
    s_mov_b32 s11, 0x00020000
    s_mov_b32 s18, 0xffff0000
    s_waitcnt lgkmcnt(0)
    ''')
    for g in range(8):
        a(f'buffer_load_dwordx4 v[{8+4*g}:{11+4*g}], v4, s[8:11], s14 offen')
        if g < 7: a('s_add_u32 s14, s14, 65536')
    for g in range(8):
        a(f's_waitcnt vmcnt({7-g})')
        for i in range(4):
            r = 8 + 4 * g + i
            if g == 0:
                a(f'v_lshlrev_b32 v{40+2*i}, 16, v{r}')
                a(f'v_and_b32 v{41+2*i}, s18, v{r}')
            else:
                a(f'v_lshlrev_b32 v6, 16, v{r}')
                a(f'v_and_b32 v7, s18, v{r}')
                a(f'v_add_f32 v{40+2*i}, v{40+2*i}, v6')
                a(f'v_add_f32 v{41+2*i}, v{41+2*i}, v7')
    for i in range(4):
        a(f'v_cvt_pk_bf16_f32 v{48+i}, v{40+2*i}, v{41+2*i}')
    a('buffer_store_dwordx4 v[48:51], v5, s[4:7], s16 offen')
    a.label('L_rexit')
    a('s_endpgm')

    lines, n = hz.fix(a.lines, verbose='-v' in sys.argv)
    print('hazard nops inserted (states):', n)
    body = '\n'.join(lines) + '\n'
    return file_text([(NAME, 256, 512, 163840), (RED, 512, 256, 0)], body,
                     [descriptor(NAME, 256, 256), descriptor(RED, 56, 56, 24)])

if __name__ == '__main__':
    open('k3.s', 'w').write(gen(stamps=False))
    A = (0, 3, 6, 9, 12, 14, 16)
    V = {'s': {}, 'c': dict(cyc=True), 'b': dict(both=True), 'a': dict(ast=A), 'a_t1': dict(ast=A, tlb=1), 's_t1': dict(tlb=1), 's_t2': dict(tlb=2)}
    for k, p in V.items():
        open(f'k3{k}.s', 'w').write(gen(stamps=True, **p))
```
